```python
import torch

def _softmax(x, axis=-1):
    return torch.softmax(x, dim=axis)
def _gelu(x):
    return torch.nn.functional.gelu(x, approximate="tanh")
def _silu(x):
    return torch.nn.functional.silu(x)
def _sigmoid(x):
    return torch.sigmoid(x)
def _layernorm(x, axis=-1, eps=1e-5):
    m = x.mean(dim=axis, keepdim=True)
    v = x.var(dim=axis, keepdim=True, unbiased=False)
    return (x - m) / torch.sqrt(v + eps)
def _scatter_add(tgt, idx, src, axis=0):
    return tgt.clone().index_add_(axis, idx, src)
def _segment_sum(src, seg, n):
    out = torch.zeros((n,) + src.shape[1:], dtype=src.dtype)
    return out.index_add_(0, seg, src)
def _pad(x, pw):
    flat = tuple(v for pair in reversed(pw) for v in pair)
    return torch.nn.functional.pad(x, flat)

kernel_name = 'parallel_sum__mha_block__dense_activation_squared_relu__prompt'

def setup_inputs():

    _w = (lambda a: (lambda t: t.to(torch.bfloat16) if t.is_floating_point() else t)(torch.as_tensor(a)))
    def _A_setup():
        B, S, D, H = 1, 2048, 448, 16
        return {
            "x": _w((lambda *s: torch.randn(*s, dtype=torch.bfloat16) * 0.05)(B, S, D)),
            "wqkv": _w((lambda *s: torch.randn(*s, dtype=torch.bfloat16) * 0.2)(D, 3 * D)),
            "wo": _w((lambda *s: torch.randn(*s, dtype=torch.bfloat16) * 0.1)(D, D)),
        }
    _A_in = _A_setup()

    def _B_setup():
        B, S, D, F = 1, 2048, 448, 1792
        return {
            "x": _w((lambda *s: torch.randn(*s, dtype=torch.bfloat16) * 0.05)(B, S, D)),
            "w1": _w((lambda *s: torch.randn(*s, dtype=torch.bfloat16) * 0.1)(D, F)),
            "b1": _w((lambda *s: torch.randn(*s, dtype=torch.bfloat16) * 0.8)(F)),
            "w2": _w((lambda *s: torch.randn(*s, dtype=torch.bfloat16) * 0.1)(F, D)),
            "b2": _w((lambda *s: torch.randn(*s, dtype=torch.bfloat16) * 12.8)(D)),
        }
    _B_in = _B_setup()

    return {
        "A_x": _A_in["x"],
        "A_wqkv": _A_in["wqkv"],
        "A_wo": _A_in["wo"],
        "B_x": _B_in["x"],
        "B_w1": _B_in["w1"],
        "B_b1": _B_in["b1"],
        "B_w2": _B_in["w2"],
        "B_b2": _B_in["b2"],
    }

def reference(A_x, A_wqkv, A_wo, B_x, B_w1, B_b1, B_w2, B_b2):
    def _A_ref(x, wqkv, wo):
        B, S, D = x.shape
        H = 16
        Dh = D // H
        qkv = (lambda x, *d: x.permute(*d))((x @ wqkv).reshape(B, S, 3, H, Dh), 2, 0, 3, 1, 4)
        q, k, v = qkv[0], qkv[1], qkv[2]
        scores = torch.einsum("bhqd,bhkd->bhqk", q, k) * (Dh ** -0.5)
        p = _softmax(scores, axis=-1)
        o = torch.einsum("bhqk,bhkd->bhqd", p, v)
        return (lambda x, *d: x.permute(*d))(o, 0, 2, 1, 3).reshape(B, S, D) @ wo

    def _B_ref(x, w1, b1, w2, b2):
        h = torch.einsum("bsd,df->bsf", x, w1) + b1
        zero = torch.zeros_like(h)
        r = torch.where(h > zero, h, zero)
        h = r * r
        out = torch.einsum("bsf,fd->bsd", h, w2) + b2
        return out

    x = A_x
    xn = _layernorm(x, axis=-1)
    return x + _A_ref(xn, A_wqkv, A_wo) + _B_ref(xn, B_w1, B_b1, B_w2, B_b2)
```

```python
import re

class Asm:
    def __init__(self):
        self.lines = []
    def __call__(self, s=""):
        for l in s.split("\n"):
            self.lines.append(l)
    def i(self, s):
        self.lines.append("    " + s)
    def label(self, s):
        self.lines.append(s + ":")
    def c(self, s):
        self.lines.append("    ; " + s)
    def text(self):
        return "\n".join(self.lines) + "\n"

def v(i, n=1):
    return f"v{i}" if n == 1 else f"v[{i}:{i+n-1}]"
def s(i, n=1):
    return f"s{i}" if n == 1 else f"s[{i}:{i+n-1}]"

TRANS = ("v_exp_f32", "v_log_f32", "v_rcp_f32", "v_rsq_f32", "v_sqrt_f32", "v_sin_f32", "v_cos_f32",
         "v_exp_f16", "v_rcp_iflag_f32")
_reg_re = re.compile(r"^(v|s|a)(\d+)$|^(v|s|a)\[(\d+):(\d+)\]$")

def _regs(tok):
    tok = tok.strip()
    neg = tok.lstrip("-")
    if neg.startswith("abs(") and neg.endswith(")"):
        neg = neg[4:-1]
    if neg.startswith("|") and neg.endswith("|"):
        neg = neg[1:-1]
    if neg == "vcc":
        return {("s", 106), ("s", 107)}
    if neg == "exec":
        return {("s", 126), ("s", 127)}
    if neg == "m0":
        return {("s", 124)}
    m = _reg_re.match(neg)
    if not m:
        return set()
    if m.group(1):
        return {(m.group(1), int(m.group(2)))}
    return {(m.group(3), r) for r in range(int(m.group(4)), int(m.group(5)) + 1)}

class Ins:
    __slots__ = ("op", "dst", "src", "text", "kind", "srcC", "srcAB", "states", "lineno")

def parse(line, lineno=0):
    t = line.split(";")[0].strip()
    if not t or t.endswith(":") or t.startswith("."):
        return None
    m = re.match(r"^(\S+)\s*(.*)$", t)
    op, rest = m.group(1), m.group(2)
    ops = []
    cur = ""
    depth = 0
    for ch in rest:
        if ch == "[": depth += 1
        if ch == "]": depth -= 1
        if ch == "," and depth == 0:
            ops.append(cur.strip()); cur = ""
        else:
            cur += ch
    if cur.strip(): ops.append(cur.strip())
    ops2 = []
    for k, o in enumerate(ops):
        parts = o.split()
        ops2.append(parts[0] if parts else "")
    mods = rest
    I = Ins(); I.op = op; I.text = t; I.dst = set(); I.src = set(); I.srcC = set(); I.srcAB = set(); I.states = 1; I.lineno = lineno
    base = op.replace("_e32", "").replace("_e64", "")
    if op.startswith("v_mfma"):
        I.kind = "mfma"
        I.dst = _regs(ops2[0]); I.srcAB = _regs(ops2[1]) | _regs(ops2[2]); I.srcC = _regs(ops2[3]); I.src = I.srcAB | I.srcC
    elif op.startswith("v_"):
        I.kind = "trans" if base in TRANS else "valu"
        if base.startswith("v_cmp"):
            I.dst = _regs(ops2[0]);
            for o in ops2[1:]: I.src |= _regs(o)
        elif base in ("v_readfirstlane_b32", "v_readlane_b32"):
            I.dst = _regs(ops2[0])
            for o in ops2[1:]: I.src |= _regs(o)
            I.kind = "readlane"
        elif base.startswith("v_permlane") and "swap" in base:
            I.dst = _regs(ops2[0]) | _regs(ops2[1]); I.src = set(I.dst); I.kind = "permlane"
        elif base in ("v_add_co_u32", "v_addc_co_u32", "v_sub_co_u32"):
            I.dst = _regs(ops2[0]) | _regs(ops2[1])
            for o in ops2[2:]: I.src |= _regs(o)
        else:
            I.dst = _regs(ops2[0])
            for o in ops2[1:]: I.src |= _regs(o)
            if base in ("v_fmac_f32", "v_dot2c_f32_bf16", "v_pk_fmac_f16"):
                I.src |= I.dst
            if base.startswith("v_cndmask") and len(ops2) == 3:
                I.src |= _regs("vcc")
            if base.startswith("v_dot"):
                I.kind = "dot"
    elif op.startswith("ds_"):
        I.kind = "ds"
        if op.startswith("ds_read") or op.startswith("ds_bpermute") or op.startswith("ds_swizzle"):
            I.dst = _regs(ops2[0])
            for o in ops2[1:]: I.src |= _regs(o)
        else:
            for o in ops2: I.src |= _regs(o)
    elif op.startswith("buffer_") or op.startswith("global_"):
        I.kind = "vmem"
        if " lds" in (" " + mods):
            for o in ops2: I.src |= _regs(o)
            I.src |= _regs("m0"); I.kind = "vmem_lds"
        elif "load" in op:
            I.dst = _regs(ops2[0])
            for o in ops2[1:]: I.src |= _regs(o)
        elif "store" in op:
            for o in ops2: I.src |= _regs(o)
            I.kind = "vmem_store"
            I.srcC = _regs(ops2[0]) if op.startswith("buffer_") else _regs(ops2[1])
        else:
            for o in ops2: I.src |= _regs(o)
    elif op.startswith("s_"):
        I.kind = "salu"
        if op == "s_nop":
            I.states = int(ops2[0], 0) + 1
        elif op in ("s_waitcnt", "s_barrier", "s_endpgm", "s_setprio", "s_sleep", "s_branch") or op.startswith("s_cbranch"):
            pass
        elif op.startswith("s_cmp"):
            for o in ops2: I.src |= _regs(o)
        else:
            I.dst = _regs(ops2[0]) if ops2 else set()
            for o in ops2[1:]: I.src |= _regs(o)
            if op.startswith("s_load") or op.startswith("s_memtime") or op.startswith("s_memrealtime"):
                I.kind = "smem"
    else:
        return None
    return I

def mfma_passes(op):
    if "32x32x16" in op: return 8
    if "16x16x32" in op: return 4
    raise ValueError(op)

def check(lines, name=""):
    ins = []
    for n, l in enumerate(lines):
        I = parse(l, n)
        if I is not None: ins.append(I)
    errs = []
    VAL = ("valu", "trans", "dot", "permlane", "readlane")
    for k, I in enumerate(ins):
        dist = 0
        j = k - 1
        while j >= 0 and dist < 24:
            P = ins[j]
            need = 0; why = ""
            vd = {r for r in P.dst if r[0] in "va"}
            sd = {r for r in P.dst if r[0] == "s"}
            if P.kind in VAL and P.kind != "readlane":
                if I.kind == "mfma" and vd & I.src:
                    need, why = 2, "VALU->MFMA operand"
                if I.kind == "permlane" and vd & I.src:
                    need, why = max(need, 2), "VALU->permlane"
                if I.kind == "readlane" and vd & I.src:
                    need, why = max(need, 1), "VALU->readlane"
                if P.kind == "trans" and I.kind in ("valu", "dot", "permlane", "mfma") and vd & I.src:
                    need, why = max(need, 1 if I.kind != "mfma" else 2), "trans->use"
                if P.kind == "dot" and I.kind in VAL + ("mfma","ds","vmem","vmem_store"):
                    if I.kind == "dot" and I.op == P.op:
                        ops = I.text.split(None, 1)[1].split(",")
                        ab = set()
                        for o in ops[1:3]: ab |= _regs(o.split()[0])
                        if vd & ab: need, why = max(need, 3), "dot->dot A/B"
                    elif vd & (I.src | I.dst):
                        need, why = max(need, 3), "dot->other"
            if P.kind in VAL and sd:
                if I.kind in ("vmem", "vmem_lds", "vmem_store") and sd & I.src:
                    need, why = max(need, 5), "VALU sgpr->VMEM"
                if I.kind in VAL and sd & I.src:
                    need, why = max(need, 2), "VALU sgpr->VALU const"
                if I.kind == "readlane" and sd & I.src:
                    need, why = max(need, 4), "VALU sgpr->lane select"
            if P.kind == "mfma":
                ps = mfma_passes(P.op)
                raw = {8: 12, 4: 8}[ps]
                if I.kind == "mfma":
                    if vd & I.srcAB: need, why = max(need, raw), "MFMA D->MFMA A/B"
                    if vd & I.srcC:
                        if I.srcC == vd and mfma_passes(I.op) == ps: pass
                        else: need, why = max(need, {8: 10, 4: 6}[ps]), "MFMA D->MFMA C partial"
                    if (vd & I.dst) and I.dst != vd:
                        need, why = max(need, raw), "MFMA D->MFMA D partial (WAW)"
                elif I.kind in VAL + ("ds", "vmem", "vmem_store", "vmem_lds"):
                    if vd & (I.src | I.dst): need, why = max(need, raw), "MFMA D->VALU/mem"
                    if I.kind in VAL and (P.srcC & I.dst): need, why = max(need, {8: 7, 4: 3}[ps]), "MFMA C WAR"
            if P.kind == "vmem_store" and I.kind in VAL and len(P.srcC) >= 3 and (P.srcC & I.dst):
                need, why = max(need, 2), "store data WAR"
            if P.kind == "salu" and ("s", 124) in P.dst and I.kind == "vmem_lds":
                need, why = max(need, 1), "M0->LDS DMA"
            if need > dist:
                errs.append(f"{name}: line {I.lineno}: '{I.text}' needs {need} states after '{P.text}' (line {P.lineno}), has {dist} [{why}]")
            dist += P.states
            j -= 1
    return errs


def expand_loops(lines):
    labels = {}
    out = []
    for n, l in enumerate(lines):
        t = l.split(";")[0].strip()
        if t.endswith(":"): labels[t[:-1]] = n
    for n, l in enumerate(lines):
        out.append(l)
        t = l.split(";")[0].strip()
        m = re.match(r"^(s_cbranch_\w+|s_branch)\s+(\S+)$", t)
        if m and m.group(2) in labels and labels[m.group(2)] < n:
            body = lines[labels[m.group(2)]+1:n]
            out += [b for b in body if not b.split(";")[0].strip().endswith(":")]
    return out

def check_all(lines, name=""):
    return check(expand_loops(lines), name)
```

```python
from asmlib import *
NAME = "parallel_sum__mha_block__dense_activation_squared_relu__prompt"
QF  = 0x000000
KF  = 0x200000
VF  = 0x400000
HF  = 0x600000
W2T = 0xD00000
WOT = 0xF00000
OF  = 0x1000000
FF  = 0x1200000
WS_USED = 0x1600000
DBGT = 0x1800000
ONES = 0x3F803F80
QSCALE = (28 ** -0.5) * 1.4426950408889634
import struct
def f2u(x): return struct.unpack("<I", struct.pack("<f", x))[0]

def srd(a, base, ptr, nbytes, off=None):
    if off is None:
        a.i(f"s_mov_b32 s{base}, s{ptr}")
        a.i(f"s_mov_b32 s{base+1}, s{ptr+1}")
    else:
        a.i(f"s_add_u32 s{base}, s{ptr}, {off}")
        a.i(f"s_addc_u32 s{base+1}, s{ptr+1}, 0")
    a.i(f"s_mov_b32 s{base+2}, {nbytes}")
    a.i(f"s_mov_b32 s{base+3}, 0x20000")

def header(a, name):
    a(f".text")
    a(f".globl {name}")
    a(f".p2align 8")
    a(f".type {name},@function")
    a(f"{name}:")

def footer(a, name, vgprs, sgprs=102):
    a(f'.section .rodata,"a"')
    a(f".p2align 6")
    a(f".amdhsa_kernel {name}")
    a(f"  .amdhsa_next_free_vgpr {vgprs}")
    a(f"  .amdhsa_next_free_sgpr {sgprs}")
    a(f"  .amdhsa_accum_offset {(vgprs+3)//4*4 if vgprs <= 256 else 256}")
    a(f"  .amdhsa_group_segment_fixed_size 0")
    a(f"  .amdhsa_kernarg_size 88")
    a(f"  .amdhsa_user_sgpr_count 2")
    a(f"  .amdhsa_user_sgpr_kernarg_segment_ptr 1")
    a(f"  .amdhsa_system_sgpr_workgroup_id_x 1")
    a(f".end_amdhsa_kernel")

def stamp(a, idx, sws, enable, tmp_s=90, tmp_v=250):
    if not enable: return
    a.i(f"s_memrealtime s[{tmp_s}:{tmp_s+1}]")
    a.i(f"s_waitcnt lgkmcnt(0)")
    a.i(f"s_lshl_b32 s{tmp_s+2}, s2, 7")
    a.i(f"s_add_u32 s{tmp_s+2}, s{tmp_s+2}, {DBGT + idx*8}")
    a.i(f"v_mov_b32 v{tmp_v}, s{tmp_s}")
    a.i(f"v_mov_b32 v{tmp_v+1}, s{tmp_s+1}")
    a.i(f"v_mov_b32 v{tmp_v+2}, 0")
    a.i(f"buffer_store_dwordx2 v[{tmp_v}:{tmp_v+1}], v{tmp_v+2}, s[{sws}:{sws+3}], s{tmp_s+2} offen")
```

```python
from common import *

XS   = 16384
WB   = 49152
WSL  = 28672
STAB = 135168
BTAB = STAB + 1024
TTAB = STAB + 2048
P0   = STAB + 3072
LDS1 = 163840

ACC = 16
WF  = [128, 156]
XF  = [184, 188]
WAD = 192
XAD = 199
VOW = 203
VOX = 210
VSUM, VSQ, VCS0, VCS1 = 214, 215, 216, 217
VLANE16 = 218
VT = 220

S_RT, S_G, S_TYPE, S_W, S_RS, S_P = 34, 35, 36, 37, 38, 39
SX, SW, SWS, SM = 40, 44, 48, 52
S_SOX, S_SOW, S_M0X, S_M0W, S_DX, S_DW, S_C, S_T, S_SH, S_T0 = 56, 57, 58, 59, 60, 61, 62, 63, 64, 65
S_TJ = 66
S_ONES = 73
S_CUR = 74
S_CX, S_CW = 75, 93
S_TMP = 76

def dma_chunk(a, pieces=False):
    g1 = [f"s_mov_b32 m0, s{S_M0X}", "s_nop 0"]
    g1 += [f"buffer_load_dwordx4 v{VOX+i}, s[{SX}:{SX+3}], s{S_SOX} offen offset:{1024*i} lds" for i in range(4)]
    g2 = [f"s_mov_b32 m0, s{S_M0W}", "s_nop 0"]
    g2 += [f"buffer_load_dwordx4 v{VOW+i}, s[{SW}:{SW+3}], s{S_SOW} offen offset:{1024*i} lds" for i in range(4)]
    g3 = [f"s_add_u32 m0, s{S_M0W}, 4096", f"s_add_u32 s{S_SOX}, s{S_SOX}, 128"]
    g3 += [f"buffer_load_dwordx4 v{VOW+4+i}, s[{SW}:{SW+3}], s{S_SOW} offen offset:{1024*i} lds" for i in range(3)]
    return g1, g2, g3

def reads(s_, nb, ns):
    R = [f"ds_read_b128 v[{XF[nb]}:{XF[nb]+3}], v{XAD+s_}"]
    for j in range(ns):
        b = WF[nb] + 4*j
        R.append(f"ds_read_b64_tr_b16 v[{b}:{b+1}], v{WAD+j} offset:{s_*7168}")
        R.append(f"ds_read_b64_tr_b16 v[{b+2}:{b+3}], v{WAD+j} offset:{s_*7168+1792}")
    return R

def dots(cb):
    D = []
    x = XF[cb]
    for d in range(4):
        D.append(f"v_dot2c_f32_bf16 v{VSUM}, s{S_ONES}, v{x+d}")
        D.append(f"v_dot2c_f32_bf16 v{VSQ}, v{x+d}, v{x+d}")
        D.append(f"v_dot2c_f32_bf16 v{VCS0}, s{S_ONES}, v{WF[cb]+d}")
        D.append(f"v_dot2c_f32_bf16 v{VCS1}, s{S_ONES}, v{WF[cb]+16+d}")
    return D

def mfmas(cb, ns, transposed):
    M = []
    for j in range(ns):
        acc = f"v[{ACC+16*j}:{ACC+16*j+15}]"
        wf = f"v[{WF[cb]+4*j}:{WF[cb]+4*j+3}]"
        xf = f"v[{XF[cb]}:{XF[cb]+3}]"
        if transposed: M.append(f"v_mfma_f32_32x32x16_bf16 {acc}, {wf}, {xf}, {acc}")
        else:          M.append(f"v_mfma_f32_32x32x16_bf16 {acc}, {xf}, {wf}, {acc}")
    return M

def interleave(a, M, fill):
    for k, m in enumerate(M):
        a.i(m)
        for f in (fill[k] if k < len(fill) else []):
            a.i(f)
    for k in range(len(M), len(fill)):
        for f in fill[k]: a.i(f)

def split(L, n):
    k, r = divmod(len(L), n)
    out = []; p = 0
    for i in range(n):
        q = k + (1 if i < r else 0)
        out.append(L[p:p+q]); p += q
    return out

def mainloop(a, tag, ns, transposed):
    a.label(f"L1_{tag}_loop")
    for s_ in range(4):
        cb = s_ & 1; nb = cb ^ 1
        M = mfmas(cb, ns, transposed)
        D = dots(cb)
        if s_ < 3:
            a.i("s_waitcnt lgkmcnt(0)")
            R = reads(s_+1, nb, ns)
            fill = split(R, 3)
            extra = []
            if s_ == 2:
                extra = [f"v_add_u32 v{WAD+j}, s{S_DW}, v{WAD+j}" for j in range(ns)] + \
                        [f"v_add_u32 v{XAD+k}, s{S_DX}, v{XAD+k}" for k in range(4)]
            fill += split(D + extra, ns - 3)
            interleave(a, M, fill)
        else:
            a.i(f"s_cmp_eq_u32 s{S_C}, 6")
            a.i(f"s_cbranch_scc1 L1_{tag}_tail")
            a.i("s_waitcnt vmcnt(11) lgkmcnt(0)")
            a.i("s_barrier")
            R = reads(0, nb, ns)
            g1, g2, g3 = dma_chunk(a)
            fill = split(R, 3)
            rest = [g1 + D[:4], g2 + D[4:8], g3 + D[8:12], D[12:]]
            if ns == 6:
                rest = [g1 + D[:5], g2 + D[5:10], g3 + D[10:]]
            fill += rest
            interleave(a, M, fill)
            a.i(f"s_add_u32 s{S_SOW}, s{S_SOW}, s{S_TMP}")
            a.i(f"s_add_u32 s{S_M0X}, s{S_M0X}, s{S_DX}")
            a.i(f"s_add_u32 s{S_M0W}, s{S_M0W}, s{S_DW}")
            a.i(f"s_add_u32 s{S_C}, s{S_C}, 1")
            a.i(f"s_add_u32 s{S_CUR}, s{S_CUR}, 1")
            a.i(f"s_cmp_eq_u32 s{S_CUR}, 3")
            a.i(f"s_cselect_b32 s{S_CUR}, 0, s{S_CUR}")
            a.i(f"s_cmp_eq_u32 s{S_CUR}, 2")
            a.i(f"s_cselect_b32 s{S_DX}, {(-2*XS) & 0xffffffff}, s{S_CX}")
            a.i(f"s_cselect_b32 s{S_DW}, {(-2*WSL) & 0xffffffff}, s{S_CW}")
            a.i(f"s_cmp_ge_u32 s{S_C}, 4")
            a.i(f"s_cselect_b32 s{SX+2}, 0, s{SX+2}")
            a.i(f"s_cselect_b32 s{SW+2}, 0, s{SW+2}")
            a.i(f"s_branch L1_{tag}_loop")
    a.label(f"L1_{tag}_tail")
    a.i("s_waitcnt lgkmcnt(0)")
    M = mfmas(1, ns, transposed); D = dots(1)
    interleave(a, M, [[], [], []] + split(D, ns - 3))

def stats_and_colsum(a, isV):
    t = VT
    a.i("s_nop 2")
    for r, tmp in ((VSUM, t+2), (VSQ, t+3), (VCS0, t+4), (VCS1, t+5)):
        a.i(f"v_mov_b32 v{tmp}, v{r}")
    a.i("s_nop 1")
    for r, tmp in ((VSUM, t+2), (VSQ, t+3), (VCS0, t+4), (VCS1, t+5)):
        a.i(f"v_permlane32_swap_b32 v{r}, v{tmp}")
    a.i("s_nop 1")
    for r, tmp in ((VSUM, t+2), (VSQ, t+3), (VCS0, t+4), (VCS1, t+5)):
        a.i(f"v_add_f32 v{r}, v{r}, v{tmp}")
    a.i(f"v_and_b32 v{t+6}, 31, v0")
    a.i(f"v_lshlrev_b32 v{t+6}, 2, v{t+6}")
    a.i(f"s_lshl_b32 s{S_TMP+2}, s{S_TJ}, 7")
    a.i(f"s_lshl_b32 s{S_TMP+3}, s{S_TJ+4}, 7")
    a.i(f"v_add_u32 v{t+7}, s{S_TMP+2}, v{t+6}")
    a.i(f"v_add_u32 v{t+8}, s{S_TMP+3}, v{t+6}")
    a.i(f"v_add_u32 v{t+7}, {STAB}, v{t+7}")
    a.i(f"v_add_u32 v{t+8}, {STAB}, v{t+8}")
    a.i(f"ds_write_b32 v{t+7}, v{VCS0}")
    a.i(f"ds_write_b32 v{t+8}, v{VCS1}")
    a.i(f"v_mul_f32 v{t}, {f2u(1.0/448):#x}, v{VSUM}")
    a.i(f"v_mul_f32 v{t+2}, {f2u(1.0/448):#x}, v{VSQ}")
    a.i(f"v_fma_f32 v{t+2}, -v{t}, v{t}, v{t+2}")
    a.i(f"v_max_f32 v{t+2}, 0, v{t+2}")
    a.i(f"v_add_f32 v{t+2}, {f2u(1e-5):#x}, v{t+2}")
    a.i(f"v_rsq_f32 v{t+1}, v{t+2}")
    if isV:
        a.i(f"s_lshl_b32 s{S_TMP+2}, s{S_W}, 7")
        a.i(f"s_add_u32 s{S_TMP+2}, s{S_TMP+2}, {TTAB}")
        a.i(f"v_add_u32 v{t+7}, s{S_TMP+2}, v{t+6}")
        a.i(f"v_sub_f32 v{t+2}, 0, v{t}")
        a.i(f"ds_write_b32 v{t+7}, v{t+2}")
        a.i(f"ds_write_b32 v{t+7}, v{t+1} offset:512")
    a.i("s_waitcnt lgkmcnt(0)")
    a.i("s_barrier")

def bc(r):
    return f"v[{r}:{r+1}]"

def epi_ffn(a):
    t = VT
    R_, NR = t+2, t+4
    a.i(f"v_mov_b32 v{R_}, v{t+1}")
    a.i(f"v_mul_f32 v{NR}, v{t}, v{t+1}")
    a.i(f"v_sub_f32 v{NR}, 0, v{NR}")
    a.i(f"v_lshrrev_b32 v{t+6}, 5, v0")
    a.i(f"v_and_b32 v{t+6}, 1, v{t+6}")
    a.i(f"v_lshlrev_b32 v{t+6}, 4, v{t+6}")
    SB, BB, PK = WF[0], WF[0]+16, WF[1]
    SB, BB, PK = 128, 144, 160
    a.i(f"s_lshl_b32 s{S_TMP+2}, s{S_RT}, 2")
    a.i(f"s_add_u32 s{S_TMP+2}, s{S_TMP+2}, s{S_W}")
    a.i(f"s_mul_i32 s{S_TMP+2}, s{S_TMP+2}, {112*1024}")
    a.i(f"s_mul_i32 s{S_TMP+3}, s{S_G}, {7*2048}")
    a.i(f"s_add_u32 s{S_TMP+2}, s{S_TMP+2}, s{S_TMP+3}")
    a.i(f"s_add_u32 s{S_TMP+2}, s{S_TMP+2}, {HF}")
    for j in range(7):
        acc = ACC + 16*j
        pk = PK + 8*(j & 1)
        a.i(f"s_lshl_b32 s{S_TMP+3}, s{S_TJ+j}, 7")
        a.i(f"v_add_u32 v{t+7}, s{S_TMP+3}, v{t+6}")
        a.i(f"v_add_u32 v{t+7}, {STAB}, v{t+7}")
        for g in range(4):
            a.i(f"ds_read_b128 v[{SB+4*g}:{SB+4*g+3}], v{t+7} offset:{32*g}")
        for g in range(4):
            a.i(f"ds_read_b128 v[{BB+4*g}:{BB+4*g+3}], v{t+7} offset:{1024+32*g}")
        a.i(f"s_lshl_b32 s{S_TMP+4}, s{S_TJ+j}, 11")
        a.i(f"s_add_u32 s{S_TMP+4}, s{S_TMP+4}, s{S_TMP+2}")
        a.i("s_waitcnt lgkmcnt(0)")
        for p in range(8):
            a.i(f"v_pk_fma_f32 v[{acc+2*p}:{acc+2*p+1}], v[{acc+2*p}:{acc+2*p+1}], {bc(R_)}, v[{BB+2*p}:{BB+2*p+1}] op_sel_hi:[1,0,1]")
        for p in range(8):
            a.i(f"v_pk_fma_f32 v[{acc+2*p}:{acc+2*p+1}], v[{SB+2*p}:{SB+2*p+1}], {bc(NR)}, v[{acc+2*p}:{acc+2*p+1}] op_sel_hi:[1,0,1]")
        for r in range(16):
            a.i(f"v_max_f32 v{acc+r}, 0, v{acc+r}")
        for p in range(8):
            a.i(f"v_pk_mul_f32 v[{acc+2*p}:{acc+2*p+1}], v[{acc+2*p}:{acc+2*p+1}], v[{acc+2*p}:{acc+2*p+1}]")
        for p in range(8):
            a.i(f"v_cvt_pk_bf16_f32 v{pk+p}, v{acc+2*p}, v{acc+2*p+1}")
        a.i(f"buffer_store_dwordx4 v[{pk}:{pk+3}], v{VLANE16}, s[{SWS}:{SWS+3}], s{S_TMP+4} offen sc1")
        a.i(f"buffer_store_dwordx4 v[{pk+4}:{pk+7}], v{VLANE16}, s[{SWS}:{SWS+3}], s{S_TMP+4} offen offset:1024 sc1")

def epi_qk(a):
    t = VT
    RS_, NR = t+2, t+4
    a.i(f"v_lshrrev_b32 v{t+6}, 5, v0")
    a.i(f"v_and_b32 v{t+6}, 1, v{t+6}")
    a.i(f"v_lshlrev_b32 v{t+6}, 4, v{t+6}")
    SB, PK = 128, 160
    a.i(f"s_mov_b32 s{S_TMP+9}, {f2u(QSCALE):#x}")
    a.i(f"s_mov_b32 s{S_TMP+6}, 0")
    a.i(f"s_mov_b32 s{S_TMP+7}, -1")
    a.i(f"s_lshl_b32 s{S_TMP+2}, s{S_RT}, 2")
    a.i(f"s_add_u32 s{S_TMP+2}, s{S_TMP+2}, s{S_W}")
    a.i(f"s_lshl_b32 s{S_TMP+2}, s{S_TMP+2}, 11")
    for j in range(7):
        acc = ACC + 16*j
        pk = PK + 8*(j & 1)
        a.i(f"s_cmp_ge_u32 s{S_TJ+j}, s{S_T}")
        a.i(f"s_cbranch_scc1 L1_qk_skip{j}")
        a.i(f"s_lshl_b32 s{S_TMP+3}, s{S_TJ+j}, 7")
        a.i(f"v_add_u32 v{t+7}, s{S_TMP+3}, v{t+6}")
        a.i(f"v_add_u32 v{t+7}, {STAB}, v{t+7}")
        for g in range(4):
            a.i(f"ds_read_b128 v[{SB+4*g}:{SB+4*g+3}], v{t+7} offset:{32*g}")
        a.i(f"s_add_u32 s{S_TMP+3}, s{S_T0}, s{S_TJ+j}")
        a.i(f"s_lshl_b32 s{S_TMP+4}, s{S_TMP+3}, 17")
        a.i(f"s_add_u32 s{S_TMP+4}, s{S_TMP+4}, s{S_TMP+2}")
        a.i(f"s_cmp_ge_u32 s{S_TMP+3}, 16")
        a.i(f"s_cselect_b32 s{S_TMP+5}, 1.0, s{S_TMP+9}")
        a.i(f"s_cselect_b32 s{S_TMP+8}, {ONES:#x}, 0")
        a.i(f"v_mul_f32 v{RS_}, s{S_TMP+5}, v{t+1}")
        a.i(f"v_mov_b32 v{t+8}, s{S_TMP+8}")
        a.i(f"v_mul_f32 v{NR}, v{t}, v{RS_}")
        a.i(f"v_lshrrev_b32 v{t+9}, 16, v{t+8}")
        a.i(f"v_sub_f32 v{NR}, 0, v{NR}")
        a.i("s_waitcnt lgkmcnt(0)")
        for p in range(8):
            a.i(f"v_pk_mul_f32 v[{acc+2*p}:{acc+2*p+1}], v[{acc+2*p}:{acc+2*p+1}], {bc(RS_)} op_sel_hi:[1,0]")
        for p in range(8):
            a.i(f"v_pk_fma_f32 v[{acc+2*p}:{acc+2*p+1}], v[{SB+2*p}:{SB+2*p+1}], {bc(NR)}, v[{acc+2*p}:{acc+2*p+1}] op_sel_hi:[1,0,1]")
        for p in range(8):
            a.i(f"v_cvt_pk_bf16_f32 v{pk+p}, v{acc+2*p}, v{acc+2*p+1}")
        a.i(f"v_cndmask_b32 v{pk+6}, v{pk+6}, v{t+8}, s[{S_TMP+6}:{S_TMP+7}]")
        a.i(f"v_cndmask_b32 v{pk+7}, v{pk+7}, v{t+9}, s[{S_TMP+6}:{S_TMP+7}]")
        a.i(f"buffer_store_dwordx4 v[{pk}:{pk+3}], v{VLANE16}, s[{SWS}:{SWS+3}], s{S_TMP+4} offen sc1")
        a.i(f"buffer_store_dwordx4 v[{pk+4}:{pk+7}], v{VLANE16}, s[{SWS}:{SWS+3}], s{S_TMP+4} offen offset:1024 sc1")
        a.label(f"L1_qk_skip{j}")
        a.i("s_nop 1")

def epi_v(a):
    t = VT
    NM, RR, PK = 128, 144, 160
    SN = t+2
    a.i(f"v_lshrrev_b32 v{t+6}, 5, v0")
    a.i(f"v_and_b32 v{t+6}, 1, v{t+6}")
    a.i(f"v_lshlrev_b32 v{t+6}, 4, v{t+6}")
    a.i(f"s_lshl_b32 s{S_TMP+2}, s{S_W}, 7")
    a.i(f"s_add_u32 s{S_TMP+2}, s{S_TMP+2}, {TTAB}")
    a.i(f"v_add_u32 v{t+7}, s{S_TMP+2}, v{t+6}")
    for g in range(4):
        a.i(f"ds_read_b128 v[{NM+4*g}:{NM+4*g+3}], v{t+7} offset:{32*g}")
    for g in range(4):
        a.i(f"ds_read_b128 v[{RR+4*g}:{RR+4*g+3}], v{t+7} offset:{512+32*g}")
    a.i(f"v_and_b32 v{t+8}, 31, v0")
    a.i(f"v_cmp_le_u32 s[{S_TMP+6}:{S_TMP+7}], 28, v{t+8}")
    a.i(f"v_cmp_eq_u32 vcc, 28, v{t+8}")
    a.i(f"v_mov_b32 v{t+9}, 0")
    a.i(f"v_mov_b32 v{t+10}, {ONES:#x}")
    a.i(f"v_cndmask_b32 v{t+9}, v{t+9}, v{t+10}, vcc")
    a.i(f"v_lshlrev_b32 v{t+8}, 2, v{t+8}")
    a.i(f"v_add_u32 v{t+8}, {STAB}, v{t+8}")
    a.i(f"s_lshl_b32 s{S_TMP+2}, s{S_RT}, 2")
    a.i(f"s_add_u32 s{S_TMP+2}, s{S_TMP+2}, s{S_W}")
    a.i(f"s_lshl_b32 s{S_TMP+2}, s{S_TMP+2}, 11")
    for j in range(6):
        acc = ACC + 16*j
        pk = PK + 8*(j & 1)
        a.i(f"s_cmp_ge_u32 s{S_TJ+j}, s{S_T}")
        a.i(f"s_cbranch_scc1 L1_v_skip{j}")
        a.i(f"s_lshl_b32 s{S_TMP+3}, s{S_TJ+j}, 7")
        a.i(f"v_add_u32 v{t+11}, s{S_TMP+3}, v{t+8}")
        a.i(f"ds_read_b32 v{SN}, v{t+11}")
        a.i(f"s_add_u32 s{S_TMP+3}, s{S_T0}, s{S_TJ+j}")
        a.i(f"s_lshl_b32 s{S_TMP+4}, s{S_TMP+3}, 17")
        a.i(f"s_add_u32 s{S_TMP+4}, s{S_TMP+4}, s{S_TMP+2}")
        a.i("s_waitcnt lgkmcnt(0)")
        for p in range(8):
            a.i(f"v_pk_fma_f32 v[{acc+2*p}:{acc+2*p+1}], v[{NM+2*p}:{NM+2*p+1}], {bc(SN)}, v[{acc+2*p}:{acc+2*p+1}] op_sel_hi:[1,0,1]")
        for p in range(8):
            a.i(f"v_pk_mul_f32 v[{acc+2*p}:{acc+2*p+1}], v[{acc+2*p}:{acc+2*p+1}], v[{RR+2*p}:{RR+2*p+1}]")
        for p in range(8):
            a.i(f"v_cvt_pk_bf16_f32 v{pk+p}, v{acc+2*p}, v{acc+2*p+1}")
        for p in range(8):
            a.i(f"v_cndmask_b32 v{pk+p}, v{pk+p}, v{t+9}, s[{S_TMP+6}:{S_TMP+7}]")
        a.i(f"buffer_store_dwordx4 v[{pk}:{pk+3}], v{VLANE16}, s[{SWS}:{SWS+3}], s{S_TMP+4} offen sc1")
        a.i(f"buffer_store_dwordx4 v[{pk+4}:{pk+7}], v{VLANE16}, s[{SWS}:{SWS+3}], s{S_TMP+4} offen offset:1024 sc1")
        a.label(f"L1_v_skip{j}")
        a.i("s_nop 1")

def prep_issue(a):
    ti = S_TMP+10
    a.i(f"s_lshl_b32 s{ti}, s{S_G}, 4")
    a.i(f"s_add_u32 s{ti}, s{ti}, s{S_RT}")
    a.i(f"s_cmp_ge_u32 s{ti}, 112")
    a.i(f"s_cbranch_scc1 L1_prep_wo_issue")
    srd(a, SM, 28, 1792*896)
    a.i(f"s_mul_i32 s{S_TMP+2}, s{ti}, 14336")
    a.i(f"s_branch L1_prep_issue_go")
    a.label("L1_prep_wo_issue")
    srd(a, SM, 20, 448*896)
    a.i(f"s_sub_u32 s{S_TMP+2}, s{ti}, 112")
    a.i(f"s_mul_i32 s{S_TMP+2}, s{S_TMP+2}, 25088")
    a.label("L1_prep_issue_go")
    a.i(f"s_mul_i32 s{S_TMP+3}, s{S_W}, 7168")
    a.i(f"s_add_u32 s{S_TMP+2}, s{S_TMP+2}, s{S_TMP+3}")
    a.i(f"s_add_u32 m0, s{S_TMP+3}, {P0}")
    a.i("s_nop 0")
    for i in range(4):
        a.i(f"buffer_load_dwordx4 v{VLANE16}, s[{SM}:{SM+3}], s{S_TMP+2} offen offset:{1024*i} lds")
    a.i(f"s_add_u32 s{S_TMP+2}, s{S_TMP+2}, 4096")
    a.i(f"s_add_u32 m0, m0, 4096")
    a.i("s_nop 0")
    for i in range(3):
        a.i(f"buffer_load_dwordx4 v{VLANE16}, s[{SM}:{SM+3}], s{S_TMP+2} offen offset:{1024*i} lds")

def prep_process(a):
    t = VT; ti = S_TMP+10
    a.i(f"v_and_b32 v{t}, 63, v0")
    a.i(f"v_lshrrev_b32 v{t+1}, 5, v{t}")
    a.i(f"v_lshlrev_b32 v{t+1}, 2, v{t+1}")
    a.i(f"v_bfe_u32 v{t+2}, v{t}, 2, 2")
    a.i(f"v_add_u32 v{t+1}, v{t+1}, v{t+2}")
    a.i(f"v_mul_u32_u24 v{t+1}, 896, v{t+1}")
    a.i(f"v_bfe_u32 v{t+2}, v{t}, 4, 1")
    a.i(f"v_lshlrev_b32 v{t+2}, 5, v{t+2}")
    a.i(f"v_add_u32 v{t+1}, v{t+1}, v{t+2}")
    a.i(f"v_and_b32 v{t+2}, 3, v{t}")
    a.i(f"v_lshlrev_b32 v{t+2}, 3, v{t+2}")
    a.i(f"v_add_u32 v{t+1}, v{t+1}, v{t+2}")
    a.i(f"v_add_u32 v{t+1}, {P0}, v{t+1}")
    a.i(f"s_lshl_b32 s{S_TMP+2}, s{S_W}, 6")
    a.i(f"v_add_u32 v{t+1}, s{S_TMP+2}, v{t+1}")
    a.i(f"s_cmp_ge_u32 s{ti}, 112")
    a.i(f"s_cbranch_scc1 L1_prep_wo")
    a.i(f"s_mul_i32 s{S_TMP+3}, s{S_W}, {112*1024}")
    a.i(f"s_lshl_b32 s{S_TMP+4}, s{ti}, 10")
    a.i(f"s_add_u32 s{S_TMP+3}, s{S_TMP+3}, s{S_TMP+4}")
    a.i(f"s_add_u32 s{S_TMP+3}, s{S_TMP+3}, {W2T}")
    for k in range(4):
        b = 128 + 4*k
        a.i(f"ds_read_b64_tr_b16 v[{b}:{b+1}], v{t+1} offset:{256*k}")
        a.i(f"ds_read_b64_tr_b16 v[{b+2}:{b+3}], v{t+1} offset:{256*k + 8*896}")
    a.i("s_waitcnt lgkmcnt(0)")
    for k in range(4):
        b = 128 + 4*k
        if k == 3:
            a.i(f"s_cmp_ge_u32 s{S_W}, 2")
            a.i(f"s_cbranch_scc1 L1_done")
        a.i(f"buffer_store_dwordx4 v[{b}:{b+3}], v{VLANE16}, s[{SWS}:{SWS+3}], s{S_TMP+3} offen sc1")
        a.i(f"s_add_u32 s{S_TMP+3}, s{S_TMP+3}, {4*112*1024}")
    a.i("s_branch L1_done")
    a.label("L1_prep_wo")
    a.i(f"s_sub_u32 s{S_TMP+4}, s{ti}, 112")
    a.i(f"s_lshl_b32 s{S_TMP+4}, s{S_TMP+4}, 11")
    a.i(f"s_lshl_b32 s{S_TMP+3}, s{S_W}, 15")
    a.i(f"s_add_u32 s{S_TMP+3}, s{S_TMP+3}, s{S_TMP+4}")
    a.i(f"s_add_u32 s{S_TMP+3}, s{S_TMP+3}, {WOT}")
    a.i(f"v_lshrrev_b32 v{t+3}, 5, v0")
    a.i(f"v_and_b32 v{t+3}, 1, v{t+3}")
    a.i(f"v_mul_u32_u24 v{t+3}, {4*896}, v{t+3}")
    a.i(f"v_sub_u32 v{t+3}, v{t+1}, v{t+3}")
    a.i(f"s_mov_b32 s{S_TMP+6}, 0")
    a.i(f"s_mov_b32 s{S_TMP+7}, -1")
    a.i(f"v_mov_b32 v{t+4}, 0")
    for k in range(4):
        b = 128 + 8*k
        a.i(f"ds_read_b64_tr_b16 v[{b}:{b+1}], v{t+1} offset:{256*k}")
        a.i(f"ds_read_b64_tr_b16 v[{b+2}:{b+3}], v{t+1} offset:{256*k + 8*896}")
        a.i(f"ds_read_b64_tr_b16 v[{b+4}:{b+5}], v{t+1} offset:{256*k + 16*896}")
        a.i(f"ds_read_b64_tr_b16 v[{b+6}:{b+7}], v{t+3} offset:{256*k + 24*896}")
    a.i("s_waitcnt lgkmcnt(0)")
    for k in range(4):
        b = 128 + 8*k
        if k == 3:
            a.i(f"s_cmp_ge_u32 s{S_W}, 2")
            a.i(f"s_cbranch_scc1 L1_done")
        a.i(f"v_cndmask_b32 v{b+6}, v{b+6}, v{t+4}, s[{S_TMP+6}:{S_TMP+7}]")
        a.i(f"v_cndmask_b32 v{b+7}, v{b+7}, v{t+4}, s[{S_TMP+6}:{S_TMP+7}]")
        a.i(f"buffer_store_dwordx4 v[{b}:{b+3}], v{VLANE16}, s[{SWS}:{SWS+3}], s{S_TMP+3} offen sc1")
        a.i(f"buffer_store_dwordx4 v[{b+4}:{b+7}], v{VLANE16}, s[{SWS}:{SWS+3}], s{S_TMP+3} offen offset:1024 sc1")
        a.i(f"s_add_u32 s{S_TMP+3}, s{S_TMP+3}, {4*32*1024}")
    a.i("s_branch L1_done")

def k1(dbg=False):
    a = Asm()
    name = "k1_kernel"
    header(a, name)
    a.i("s_cmp_ge_u32 s2, 256")
    a.i("s_cbranch_scc1 L1_end")
    a.i("s_load_dwordx16 s[16:31], s[0:1], 0")
    a.i("s_load_dwordx2 s[32:33], s[0:1], 80")
    t = VT
    a.i("s_and_b32 s3, s2, 7")
    a.i("s_lshr_b32 s4, s2, 3")
    a.i("s_and_b32 s5, s3, 1")
    a.i("s_lshl_b32 s5, s5, 3")
    a.i("s_and_b32 s6, s4, 7")
    a.i(f"s_add_u32 s{S_RT}, s5, s6")
    a.i("s_lshr_b32 s6, s4, 3")
    a.i("s_lshr_b32 s7, s3, 1")
    a.i("s_lshl_b32 s7, s7, 1")
    a.i("s_and_b32 s8, s6, 1")
    a.i(f"s_add_u32 s{S_G}, s7, s8")
    a.i("s_lshr_b32 s8, s6, 1")
    a.i(f"v_lshrrev_b32 v1, 6, v0")
    a.i(f"v_and_b32 v{t}, 63, v0")
    a.i(f"v_readfirstlane_b32 s{S_W}, v1")
    a.i(f"v_lshlrev_b32 v{VLANE16}, 4, v{t}")
    a.i(f"s_mov_b32 s{S_ONES}, {ONES:#x}")
    a.i(f"s_cmp_ge_u32 s{S_G}, 5")
    a.i(f"s_cselect_b32 s{S_TYPE}, 2, 1")
    a.i(f"s_cmp_eq_u32 s8, 1")
    a.i(f"s_cselect_b32 s{S_TYPE}, 0, s{S_TYPE}")
    a.i("s_mov_b32 s10, 0x140E0700")
    a.i("s_mov_b32 s11, 0x2B26201A")
    a.i(f"s_lshl_b32 s12, s{S_G}, 3")
    a.i("s_lshr_b64 s[10:11], s[10:11], s12")
    a.i(f"s_and_b32 s{S_T0}, s10, 0xff")
    a.i("s_mov_b32 s10, 0x55666677")
    a.i(f"s_lshl_b32 s12, s{S_G}, 2")
    a.i("s_lshr_b32 s10, s10, s12")
    a.i(f"s_and_b32 s{S_T}, s10, 0xf")
    a.i(f"s_mul_i32 s10, s{S_T0}, 56")
    a.i(f"s_mul_i32 s11, s{S_G}, 448")
    a.i(f"s_cmp_eq_u32 s{S_TYPE}, 0")
    a.i(f"s_cselect_b32 s10, s11, s10")
    a.i(f"s_movk_i32 s12, 2688")
    a.i(f"s_cselect_b32 s{S_RS}, 3584, s12")
    a.i(f"s_cselect_b32 s{S_P}, 64, 56")
    a.i(f"s_cselect_b32 s{S_T}, 7, s{S_T}")
    a.i(f"s_and_b32 s{S_SH}, s10, 15")
    a.i(f"s_sub_u32 s10, s10, s{S_SH}")
    a.i(f"s_cmp_eq_u32 s{S_TYPE}, 2")
    a.i(f"s_cselect_b32 s11, 6, 7")
    for j in range(7):
        a.i(f"s_add_u32 s{S_TJ+j}, s{S_W}, {j}")
        a.i(f"s_cmp_ge_u32 s{S_TJ+j}, s11")
        a.i(f"s_cselect_b32 s12, s11, 0")
        a.i(f"s_sub_u32 s{S_TJ+j}, s{S_TJ+j}, s12")
    a.i(f"s_lshl_b32 s12, s{S_RT}, 7")
    a.i(f"s_lshl_b32 s13, s{S_W}, 5")
    a.i(f"s_add_u32 s12, s12, s13")
    a.i(f"s_mul_i32 s{S_SOX}, s12, 896")
    a.i(f"s_lshl_b32 s13, s{S_W}, 4")
    a.i(f"s_mul_i32 s13, s13, s{S_RS}")
    a.i(f"s_add_u32 s{S_SOW}, s13, s10")
    a.i(f"s_lshl_b32 s{S_TMP}, s{S_RS}, 6")
    a.i(f"s_lshl_b32 s{S_M0X}, s{S_W}, 12")
    a.i(f"s_mul_i32 s{S_M0W}, s{S_W}, 7168")
    a.i(f"s_add_u32 s{S_M0W}, s{S_M0W}, {WB}")
    a.i(f"v_lshrrev_b32 v{t+1}, 3, v{t}")
    a.i(f"v_lshrrev_b32 v{t+2}, 4, v{t}")
    a.i(f"v_and_b32 v{t+3}, 7, v{t}")
    for i in range(4):
        a.i(f"v_xor_b32 v{t+4}, v{t+3}, v{t+2}")
        if i & 1: a.i(f"v_xor_b32 v{t+4}, 4, v{t+4}")
        a.i(f"v_lshlrev_b32 v{t+4}, 4, v{t+4}")
        a.i(f"v_mul_u32_u24 v{t+5}, 896, v{t+1}")
        a.i(f"v_add_u32 v{t+4}, v{t+4}, v{t+5}")
        a.i(f"v_add_u32 v{VOX+i}, {8*i*896 - 1024*i}, v{t+4}")
    for i in range(7):
        a.i(f"v_add_u32 v{t+4}, {64*i}, v{t}")
        a.i(f"v_mul_u32_u24 v{t+5}, 2341, v{t+4}")
        a.i(f"v_lshrrev_b32 v{t+5}, 16, v{t+5}")
        a.i(f"v_mul_u32_u24 v{t+6}, 28, v{t+5}")
        a.i(f"v_sub_u32 v{t+4}, v{t+4}, v{t+6}")
        a.i(f"v_lshlrev_b32 v{t+4}, 4, v{t+4}")
        a.i(f"v_mul_lo_u32 v{t+5}, v{t+5}, s{S_RS}")
        a.i(f"v_add_u32 v{t+4}, v{t+4}, v{t+5}")
        a.i(f"v_subrev_u32 v{VOW+i}, {(i&3)*1024}, v{t+4}")
    a.i("s_waitcnt lgkmcnt(0)")
    srd(a, SX, 16, 2048*896)
    a.i(f"s_cmp_eq_u32 s{S_TYPE}, 0")
    a.i(f"s_cselect_b32 s{SW}, s24, s18")
    a.i(f"s_cselect_b32 s{SW+1}, s25, s19")
    a.i(f"s_mov_b32 s{SW+2}, {448*2688}")
    a.i(f"s_cselect_b32 s{SW+2}, {448*3584}, s{SW+2}")
    a.i(f"s_mov_b32 s{SW+3}, 0x20000")
    srd(a, SWS, 32, WS_USED + 0x400000)
    stamp(a, 0, SWS, dbg)
    a.i(f"s_cmp_eq_u32 s{S_TYPE}, 0")
    a.i("s_cbranch_scc0 L1_side_prep")
    srd(a, SM, 26, 3584)
    a.i(f"s_mul_i32 s12, s{S_G}, 448")
    a.i(f"v_lshlrev_b32 v{t+8}, 1, v0")
    a.i(f"buffer_load_ushort v{t+9}, v{t+8}, s[{SM}:{SM+3}], s12 offen")
    a.i("s_branch L1_side_done")
    a.label("L1_side_prep")
    prep_issue(a)
    a.label("L1_side_done")
    for c in range(3):
        g1, g2, g3 = dma_chunk(a)
        for x in g1 + g2 + g3: a.i(x)
        a.i(f"s_add_u32 s{S_SOW}, s{S_SOW}, s{S_TMP}")
        if c < 2:
            a.i(f"s_add_u32 s{S_M0X}, s{S_M0X}, {XS}")
            a.i(f"s_add_u32 s{S_M0W}, s{S_M0W}, {WSL}")
        else:
            a.i(f"s_sub_u32 s{S_M0X}, s{S_M0X}, {2*XS}")
            a.i(f"s_sub_u32 s{S_M0W}, s{S_M0W}, {2*WSL}")
    a.i(f"v_lshrrev_b32 v{t+1}, 5, v{t}")
    a.i(f"v_and_b32 v{t+2}, 31, v{t}")
    a.i(f"v_bfe_u32 v{t+3}, v{t+2}, 1, 3")
    a.i(f"v_lshlrev_b32 v{t+4}, 7, v{t+2}")
    a.i(f"s_lshl_b32 s12, s{S_W}, 12")
    a.i(f"v_add_u32 v{t+4}, s12, v{t+4}")
    for k in range(4):
        a.i(f"v_add_u32 v{t+5}, {2*k}, v{t+1}")
        a.i(f"v_xor_b32 v{t+5}, v{t+5}, v{t+3}")
        a.i(f"v_lshlrev_b32 v{t+5}, 4, v{t+5}")
        a.i(f"v_add_u32 v{XAD+k}, v{t+4}, v{t+5}")
    a.i(f"v_lshlrev_b32 v{t+4}, 3, v{t+1}")
    a.i(f"v_bfe_u32 v{t+5}, v{t}, 2, 2")
    a.i(f"v_add_u32 v{t+4}, v{t+4}, v{t+5}")
    a.i(f"v_mul_u32_u24 v{t+4}, 448, v{t+4}")
    a.i(f"v_bfe_u32 v{t+5}, v{t}, 4, 1")
    a.i(f"v_lshlrev_b32 v{t+5}, 5, v{t+5}")
    a.i(f"v_add_u32 v{t+4}, v{t+4}, v{t+5}")
    a.i(f"v_and_b32 v{t+5}, 3, v{t}")
    a.i(f"v_lshlrev_b32 v{t+5}, 3, v{t+5}")
    a.i(f"v_add_u32 v{t+4}, v{t+4}, v{t+5}")
    a.i(f"s_add_u32 s12, s{S_SH}, {WB}")
    a.i(f"v_add_u32 v{t+4}, s12, v{t+4}")
    for j in range(7):
        a.i(f"s_mul_i32 s13, s{S_TJ+j}, s{S_P}")
        a.i(f"v_add_u32 v{WAD+j}, s13, v{t+4}")
    for r in range(ACC, ACC+112): a.i(f"v_mov_b32 v{r}, 0")
    for r in (VSUM, VSQ, VCS0, VCS1): a.i(f"v_mov_b32 v{r}, 0")
    a.i(f"s_mov_b32 s{S_C}, 0")
    a.i(f"s_mov_b32 s{S_CUR}, 0")
    a.i(f"s_mov_b32 s{S_DX}, {XS}")
    a.i(f"s_mov_b32 s{S_DW}, {WSL}")
    a.i(f"s_mov_b32 s{S_CX}, {XS}")
    a.i(f"s_mov_b32 s{S_CW}, {WSL}")
    a.i(f"s_cmp_eq_u32 s{S_TYPE}, 0")
    a.i("s_cbranch_scc0 L1_nobias")
    a.i("s_waitcnt vmcnt(33)")
    a.i(f"v_lshlrev_b32 v{t+9}, 16, v{t+9}")
    a.i(f"v_lshlrev_b32 v{t+8}, 2, v0")
    a.i(f"v_add_u32 v{t+8}, {BTAB}, v{t+8}")
    a.i(f"ds_write_b32 v{t+8}, v{t+9}")
    a.label("L1_nobias")
    a.i("s_waitcnt vmcnt(22) lgkmcnt(0)")
    a.i("s_barrier")
    stamp(a, 1, SWS, dbg)
    a.i(f"s_cmp_eq_u32 s{S_TYPE}, 2")
    a.i("s_cbranch_scc1 L1_V")
    for r in reads(0, 0, 7): a.i(r)
    mainloop(a, "A", 7, True)
    stamp(a, 2, SWS, dbg)
    stats_and_colsum(a, False)
    a.i(f"s_cmp_eq_u32 s{S_TYPE}, 0")
    a.i("s_cbranch_scc0 L1_QK")
    epi_ffn(a)
    stamp(a, 3, SWS, dbg)
    a.i("s_branch L1_end")
    a.label("L1_QK")
    epi_qk(a)
    a.i("s_branch L1_prep")
    a.label("L1_V")
    for r in reads(0, 0, 6): a.i(r)
    mainloop(a, "B", 6, False)
    stats_and_colsum(a, True)
    epi_v(a)
    a.label("L1_prep")
    prep_process(a)
    a.label("L1_done")
    stamp(a, 3, SWS, dbg)
    a.label("L1_end")
    a.i("s_endpgm")
    footer(a, name, 256)
    return a

if __name__ == "__main__":
    a = k1()
    open("k1.s", "w").write('.amdgcn_target "amdgcn-amd-amdhsa--gfx950"\n' + a.text())
    errs = check(a.lines, "k1")
    print("\n".join(errs[:40])); print(len(errs), "hazard findings")
```

```python
from common import *

BIAS = 60.0
LDS2 = 131072
RB = 65536
Q = 8; O = 40; S = [104, 120]; P = 136; K = 144; V = 176
KT = 208; T2 = 216; T3 = 232
VL16 = 1
S_H, S_QB, S_W, S_WL, S_XCD, S_SLOT = 34, 35, 36, 37, 38, 39
SK, SV, SWS, SX, SB2 = 40, 44, 48, 52, 56
S_KO, S_VO, S_IT = 60, 61, 62
S_HI = 64
S_T = 70

def mf(d, a_, b_, c_):
    cs = "0" if c_ is None else f"v[{c_}:{c_+15}]"
    return f"v_mfma_f32_32x32x16_bf16 v[{d}:{d+15}], v[{a_}:{a_+3}], v[{b_}:{b_+3}], {cs}"

def step(a, tl, qt, first_skip=False):
    st = tl*4 + qt
    sb = st & 1; nb = sb ^ 1
    nq = (qt + 1) & 3; nk = tl if qt < 3 else (tl + 1) & 3
    pq = (qt - 1) & 3; pv = tl if qt > 0 else (tl - 1) & 3
    Sc = S[sb]; Sn = S[nb]
    def e(i): a.i(f"v_exp_f32 v{Sc+i}, v{Sc+i}")
    def c(i): a.i(f"v_cvt_pk_bf16_f32 v{P+i}, v{Sc+2*i}, v{Sc+2*i+1}")
    if qt == 3: a.i("s_waitcnt vmcnt(10)")
    a.i(mf(Sn, K+8*nk, Q+8*nq, None))
    for i in range(0, 4): e(i)
    c(0); c(1)
    if qt == 3:
        a.i(f"buffer_load_dwordx4 v[{K+8*tl}:{K+8*tl+3}], v{VL16}, s[{SK}:{SK+3}], s{S_KO} offen")
        a.i(f"buffer_load_dwordx4 v[{K+8*tl+4}:{K+8*tl+7}], v{VL16}, s[{SK}:{SK+3}], s{S_KO} offen offset:1024")
        a.i(f"s_add_u32 s{S_KO}, s{S_KO}, 2048")
    if first_skip:
        a.i(f"s_cmp_eq_u32 s{S_IT}, 0")
        a.i(f"s_cbranch_scc1 L2_skip_first")
    a.i(mf(O+16*pq, V+8*pv+4, P+4, O+16*pq))
    if first_skip:
        a.label("L2_skip_first")
    for i in range(4, 8): e(i)
    c(2); c(3)
    if qt == 1:
        b = V + 8*((tl - 1) & 3)
        a.i(f"buffer_load_dwordx4 v[{b}:{b+3}], v{VL16}, s[{SV}:{SV+3}], s{S_VO} offen")
        a.i(f"buffer_load_dwordx4 v[{b+4}:{b+7}], v{VL16}, s[{SV}:{SV+3}], s{S_VO} offen offset:1024")
        a.i(f"s_add_u32 s{S_VO}, s{S_VO}, 2048")
    a.i(mf(Sn, K+8*nk+4, Q+8*nq+4, Sn))
    for i in range(8, 12): e(i)
    c(4); c(5)
    if qt == 0: a.i("s_waitcnt vmcnt(10)")
    a.i(mf(O+16*qt, V+8*tl, P, O+16*qt))
    for i in range(12, 16): e(i)
    c(6); c(7)

def rowmax16(a, src, dst):
    a.i(f"v_max3_f32 v{dst}, v{src}, v{src+1}, v{src+2}")
    for k in range(3, 15, 2):
        a.i(f"v_max3_f32 v{dst}, v{dst}, v{src+k}, v{src+k+1}")
    a.i(f"v_max_f32 v{dst}, v{dst}, v{src+15}")

def attention(a, dbg):
    t = 248
    a.i(f"s_lshl_b32 s{S_T}, s{S_H}, 6")
    a.i(f"s_lshl_b32 s{S_T+1}, s{S_WL}, 4")
    a.i(f"s_add_u32 s{S_T}, s{S_T}, s{S_T+1}")
    a.i(f"s_lshl_b32 s{S_T}, s{S_T}, 11")
    a.i(f"s_add_u32 s{S_T+1}, s{S_T}, {KF}")
    srd(a, SK, 32, 32768, off=f"s{S_T+1}")
    a.i(f"s_add_u32 s{S_T+1}, s{S_T}, {VF}")
    srd(a, SV, 32, 32768, off=f"s{S_T+1}")
    a.i(f"s_lshl_b32 s{S_T}, s{S_H}, 6")
    a.i(f"s_lshl_b32 s{S_T+1}, s{S_QB}, 2")
    a.i(f"s_add_u32 s{S_T}, s{S_T}, s{S_T+1}")
    a.i(f"s_lshl_b32 s{S_T}, s{S_T}, 11")
    a.i(f"s_add_u32 s{S_T+2}, s{S_T}, {QF}")
    a.i(f"s_add_u32 s{S_T+3}, s{S_T+2}, 4096")
    for qt in range(4):
        so = S_T+2 if qt < 2 else S_T+3
        for h in range(2):
            a.i(f"buffer_load_dwordx4 v[{Q+8*qt+4*h}:{Q+8*qt+4*h+3}], v{VL16}, s[{SWS}:{SWS+3}], s{so} offen offset:{(qt&1)*2048+h*1024}")
    a.i(f"s_lshl_b32 s{S_T+4}, s{S_H}, 17")
    a.i(f"s_add_u32 s{S_T+4}, s{S_T+4}, {KF}")
    a.i(f"buffer_load_dwordx4 v[{KT}:{KT+3}], v{VL16}, s[{SWS}:{SWS+3}], s{S_T+4} offen")
    a.i(f"buffer_load_dwordx4 v[{KT+4}:{KT+7}], v{VL16}, s[{SWS}:{SWS+3}], s{S_T+4} offen offset:1024")
    a.i(f"s_mov_b32 s{S_KO}, 0")
    for i in range(4):
        a.i(f"buffer_load_dwordx4 v[{K+8*i}:{K+8*i+3}], v{VL16}, s[{SK}:{SK+3}], s{S_KO} offen")
        a.i(f"buffer_load_dwordx4 v[{K+8*i+4}:{K+8*i+7}], v{VL16}, s[{SK}:{SK+3}], s{S_KO} offen offset:1024")
        if i < 3:
            a.i(f"buffer_load_dwordx4 v[{V+8*i}:{V+8*i+3}], v{VL16}, s[{SV}:{SV+3}], s{S_KO} offen")
            a.i(f"buffer_load_dwordx4 v[{V+8*i+4}:{V+8*i+7}], v{VL16}, s[{SV}:{SV+3}], s{S_KO} offen offset:1024")
        a.i(f"s_add_u32 s{S_KO}, s{S_KO}, 2048")
    a.i(f"s_mov_b32 s{S_VO}, {3*2048}")
    for r in range(O, O+64): a.i(f"v_mov_b32 v{r}, 0")
    a.i(f"s_mov_b32 s{S_IT}, 0")
    a.i("s_waitcnt vmcnt(14)")
    TD = [S[0], S[1], T2, T3]
    for qt in range(4): a.i(mf(TD[qt], KT, Q+8*qt, None))
    for qt in range(4): a.i(mf(TD[qt], KT+4, Q+8*qt+4, TD[qt]))
    a.i("s_nop 8")
    for qt in range(4):
        rowmax16(a, TD[qt], t+qt)
    for qt in range(4): a.i(f"v_mov_b32 v{t+4+qt}, v{t+qt}")
    a.i("s_nop 1")
    for qt in range(4): a.i(f"v_permlane32_swap_b32 v{t+qt}, v{t+4+qt}")
    a.i("s_nop 1")
    for qt in range(4): a.i(f"v_max_f32 v{t+qt}, v{t+qt}, v{t+4+qt}")
    for qt in range(4): a.i(f"v_sub_f32 v{t+qt}, {f2u(-BIAS):#x}, v{t+qt}")
    for qt in range(4): a.i(f"v_cvt_pk_bf16_f32 v{t+qt}, v{t+qt}, 0")
    for qt in range(4): a.i(f"v_cndmask_b32 v{Q+8*qt+6}, v{Q+8*qt+6}, v{t+qt}, s[{S_HI}:{S_HI+1}]")
    a.i("s_waitcnt vmcnt(12)")
    a.i(mf(S[0], K, Q, None))
    a.i(mf(S[0], K+4, Q+4, S[0]))
    a.i("s_nop 7")
    a.i("s_nop 3")
    stamp(a, 5, SWS, dbg, tmp_v=252)
    a.label("L2_loop")
    for tl in range(4):
        for qt in range(4):
            step(a, tl, qt, first_skip=(tl == 0 and qt == 0))
    a.i(f"s_add_u32 s{S_IT}, s{S_IT}, 1")
    a.i(f"s_cmp_lt_u32 s{S_IT}, 4")
    a.i("s_cbranch_scc1 L2_loop")
    a.i("s_nop 1")
    a.i(mf(O+48, V+8*3+4, P+4, O+48))
    stamp(a, 6, SWS, dbg, tmp_v=252)
    a.i(f"s_lshl_b32 s{S_T}, s{S_WL}, 12")
    a.i(f"v_add_u32 v{t}, s{S_T}, v{VL16}")
    for qt in range(4):
        if qt == 3:
            a.i("s_nop 7")
        for g in range(4):
            a.i(f"ds_write_b128 v{t}, v[{O+16*qt+4*g}:{O+16*qt+4*g+3}] offset:{qt*16384+g*1024}")
    a.i("s_waitcnt vmcnt(0) lgkmcnt(0)")
    a.i("s_barrier")
    a.i(f"s_lshl_b32 s{S_T}, s{S_WL}, 14")
    a.i(f"v_add_u32 v{t}, s{S_T}, v{VL16}")
    for src in range(4):
        for g in range(4):
            a.i(f"ds_read_b128 v[{O+16*src+4*g}:{O+16*src+4*g+3}], v{t} offset:{src*4096+g*1024}")
    a.i("s_waitcnt lgkmcnt(0)")
    for r in range(16):
        a.i(f"v_add_f32 v{O+r}, v{O+r}, v{O+16+r}")
        a.i(f"v_add_f32 v{O+32+r}, v{O+32+r}, v{O+48+r}")
    for r in range(16):
        a.i(f"v_add_f32 v{O+r}, v{O+r}, v{O+32+r}")
    a.i(f"s_mov_b32 s{S_T+6}, 0")
    a.label("L2_norm")
    a.i(f"v_mov_b32 v{t}, v{O+12}")
    a.i(f"v_mov_b32 v{t+1}, v{O+12}")
    a.i("s_nop 1")
    a.i(f"v_permlane32_swap_b32 v{t}, v{t+1}")
    a.i("s_nop 1")
    a.i(f"v_rcp_f32 v{t+2}, v{t+1}")
    a.i("s_nop 0")
    for r in range(16):
        a.i(f"v_mul_f32 v{O+r}, v{O+r}, v{t+2}")
    a.i(f"s_cmp_lg_u32 s{S_T+6}, 0")
    a.i("s_cbranch_scc1 L2_store")
    a.i(f"v_mov_b32 v{t+3}, {f2u(2.0**-100):#x}")
    a.i(f"v_mov_b32 v{t+4}, {f2u(2.0**120):#x}")
    a.i(f"v_cmp_nge_f32 vcc, v{t+1}, v{t+3}")
    a.i(f"v_cmp_nle_f32 s[{S_T+8}:{S_T+9}], v{t+1}, v{t+4}")
    a.i(f"s_or_b64 s[{S_T+8}:{S_T+9}], s[{S_T+8}:{S_T+9}], vcc")
    a.i(f"v_mul_f32 v{t+5}, 0, v{O}")
    for r in range(1, 16):
        a.i(f"v_fma_f32 v{t+5}, v{O+r}, 0, v{t+5}")
    a.i(f"v_cmp_u_f32 vcc, v{t+5}, v{t+5}")
    a.i(f"s_or_b64 s[{S_T+8}:{S_T+9}], s[{S_T+8}:{S_T+9}], vcc")
    a.i(f"s_cmp_lg_u64 s[{S_T+8}:{S_T+9}], 0")
    a.i("s_cbranch_scc1 L2_slow")
    a.label("L2_store")
    for p in range(8):
        a.i(f"v_cvt_pk_bf16_f32 v{P+p}, v{O+2*p}, v{O+2*p+1}")
    a.i(f"s_lshl_b32 s{S_T}, s{S_QB}, 2")
    a.i(f"s_add_u32 s{S_T}, s{S_T}, s{S_WL}")
    a.i(f"s_lshl_b32 s{S_T}, s{S_T}, 4")
    a.i(f"s_add_u32 s{S_T}, s{S_T}, s{S_H}")
    a.i(f"s_lshl_b32 s{S_T}, s{S_T}, 11")
    a.i(f"s_add_u32 s{S_T}, s{S_T}, {OF}")
    a.i(f"buffer_store_dwordx4 v[{P}:{P+3}], v{VL16}, s[{SWS}:{SWS+3}], s{S_T} offen sc1")
    a.i(f"buffer_store_dwordx4 v[{P+4}:{P+7}], v{VL16}, s[{SWS}:{SWS+3}], s{S_T} offen offset:1024 sc1")
    stamp(a, 7, SWS, dbg, tmp_v=252)
    a.i("s_endpgm")
    a.label("L2_slow")
    a.i(f"s_lshl_b32 s{S_T}, s{S_WL}, 11")
    a.i(f"s_add_u32 s{S_T}, s{S_T}, s{S_T+2}")
    a.i(f"buffer_load_dwordx4 v[{Q}:{Q+3}], v{VL16}, s[{SWS}:{SWS+3}], s{S_T} offen")
    a.i(f"buffer_load_dwordx4 v[{Q+4}:{Q+7}], v{VL16}, s[{SWS}:{SWS+3}], s{S_T} offen offset:1024")
    a.i(f"v_mov_b32 v{t}, 0xff800000")
    a.i(f"s_mov_b32 s{S_T+1}, s{S_T+4}")
    a.i(f"s_mov_b32 s{S_IT}, 0")
    a.label("L2_slow1")
    a.i(f"buffer_load_dwordx4 v[{KT}:{KT+3}], v{VL16}, s[{SWS}:{SWS+3}], s{S_T+1} offen")
    a.i(f"buffer_load_dwordx4 v[{KT+4}:{KT+7}], v{VL16}, s[{SWS}:{SWS+3}], s{S_T+1} offen offset:1024")
    a.i("s_waitcnt vmcnt(0)")
    a.i(mf(S[0], KT, Q, None))
    a.i(mf(S[0], KT+4, Q+4, S[0]))
    a.i("s_nop 7")
    a.i("s_nop 3")
    rowmax16(a, S[0], t+1)
    a.i(f"v_max_f32 v{t}, v{t}, v{t+1}")
    a.i(f"s_add_u32 s{S_T+1}, s{S_T+1}, 2048")
    a.i(f"s_add_u32 s{S_IT}, s{S_IT}, 1")
    a.i(f"s_cmp_lt_u32 s{S_IT}, 64")
    a.i("s_cbranch_scc1 L2_slow1")
    a.i(f"v_mov_b32 v{t+1}, v{t}")
    a.i("s_nop 1")
    a.i(f"v_permlane32_swap_b32 v{t}, v{t+1}")
    a.i("s_nop 1")
    a.i(f"v_max_f32 v{t}, v{t}, v{t+1}")
    a.i(f"v_sub_f32 v{t}, 0, v{t}")
    a.i(f"v_cvt_pk_bf16_f32 v{t+1}, v{t}, 0")
    a.i(f"v_lshlrev_b32 v{t+2}, 16, v{t+1}")
    a.i(f"v_sub_f32 v{t+3}, v{t}, v{t+2}")
    a.i(f"v_cvt_pk_bf16_f32 v{t+4}, v{t+3}, 0")
    a.i(f"v_lshlrev_b32 v{t+5}, 16, v{t+4}")
    a.i(f"v_sub_f32 v{t+3}, v{t+3}, v{t+5}")
    a.i(f"v_cvt_pk_bf16_f32 v{t+6}, v{t+3}, 0")
    a.i(f"v_or_b32 v{t+1}, v{t+1}, v{t+5}")
    a.i(f"v_cndmask_b32 v{Q+6}, v{Q+6}, v{t+1}, s[{S_HI}:{S_HI+1}]")
    a.i(f"v_cndmask_b32 v{Q+7}, v{Q+7}, v{t+6}, s[{S_HI}:{S_HI+1}]")
    for r in range(O, O+16): a.i(f"v_mov_b32 v{r}, 0")
    a.i(f"s_mov_b32 s{S_T+1}, s{S_T+4}")
    a.i(f"s_mov_b32 s{S_IT}, 0")
    a.label("L2_slow2")
    a.i(f"s_add_u32 s{S_T}, s{S_T+1}, {VF-KF}")
    a.i(f"buffer_load_dwordx4 v[{KT}:{KT+3}], v{VL16}, s[{SWS}:{SWS+3}], s{S_T+1} offen")
    a.i(f"buffer_load_dwordx4 v[{KT+4}:{KT+7}], v{VL16}, s[{SWS}:{SWS+3}], s{S_T+1} offen offset:1024")
    a.i(f"buffer_load_dwordx4 v[{T2}:{T2+3}], v{VL16}, s[{SWS}:{SWS+3}], s{S_T} offen")
    a.i(f"buffer_load_dwordx4 v[{T2+4}:{T2+7}], v{VL16}, s[{SWS}:{SWS+3}], s{S_T} offen offset:1024")
    a.i("s_waitcnt vmcnt(0)")
    a.i(mf(S[0], KT, Q, None))
    a.i(mf(S[0], KT+4, Q+4, S[0]))
    a.i("s_nop 7")
    a.i("s_nop 3")
    for i in range(16): a.i(f"v_exp_f32 v{S[0]+i}, v{S[0]+i}")
    a.i("s_nop 0")
    for i in range(8): a.i(f"v_cvt_pk_bf16_f32 v{P+i}, v{S[0]+2*i}, v{S[0]+2*i+1}")
    a.i("s_nop 1")
    a.i(mf(O, T2, P, O))
    a.i(mf(O, T2+4, P+4, O))
    a.i(f"s_add_u32 s{S_T+1}, s{S_T+1}, 2048")
    a.i(f"s_add_u32 s{S_IT}, s{S_IT}, 1")
    a.i(f"s_cmp_lt_u32 s{S_IT}, 64")
    a.i("s_cbranch_scc1 L2_slow2")
    a.i("s_nop 7")
    a.i("s_nop 7")
    a.i(f"s_mov_b32 s{S_T+6}, 1")
    a.i("s_branch L2_norm")

AF = 8
FB = 72
XR = 184
BR = 192
VA, VB = 200, 201

def ffn_step(a, k, load, wait):
    b = FB + 16*k
    a.i(f"s_waitcnt vmcnt({wait})")
    for ti in range(2):
        for ci in range(2):
            d = AF + 16*(ti*2+ci)
            a.i(mf(d, b+8+4*ci, b+4*ti, d))
    if load:
        vo = VA if k < 4 else VB
        off = (k & 3) * 1024
        for j, so in enumerate((S_T, S_T+1, S_T+2, S_T+3)):
            a.i(f"buffer_load_dwordx4 v[{b+4*j}:{b+4*j+3}], v{vo}, s[{SWS}:{SWS+3}], s{so} offen offset:{off}")

def ffn(a, dbg):
    t = 248
    a.i(f"s_cmp_ge_u32 s{S_SLOT}, 28")
    a.i("s_cbranch_scc1 L2_ffn_none")
    a.i(f"s_mul_i32 s{S_T+4}, s{S_SLOT}, 37")
    a.i(f"s_lshr_b32 s{S_T+4}, s{S_T+4}, 8")
    a.i(f"s_mul_i32 s{S_T+5}, s{S_T+4}, 7")
    a.i(f"s_sub_u32 s{S_T+5}, s{S_SLOT}, s{S_T+5}")
    a.i(f"s_lshl_b32 s{S_T+6}, s{S_XCD}, 2")
    a.i(f"s_add_u32 s{S_T+4}, s{S_T+4}, s{S_T+6}")
    a.i(f"s_lshl_b32 s{S_T+4}, s{S_T+4}, 1")
    a.i(f"s_lshl_b32 s{S_T+5}, s{S_T+5}, 1")
    a.i(f"s_lshr_b32 s{S_T+6}, s{S_WL}, 1")
    a.i(f"s_add_u32 s{S_T+6}, s{S_T+6}, s{S_T+4}")
    a.i(f"s_and_b32 s{S_T+7}, s{S_WL}, 1")
    a.i(f"s_add_u32 s{S_T+7}, s{S_T+7}, s{S_T+5}")
    srd(a, SX, 16, 2048*896)
    srd(a, SB2, 30, 896)
    a.i(f"v_and_b32 v{t}, 31, v0")
    a.i(f"v_mul_u32_u24 v{t}, 896, v{t}")
    a.i(f"v_bfe_u32 v{t+1}, v0, 5, 1")
    a.i(f"v_lshlrev_b32 v{t+1}, 3, v{t+1}")
    a.i(f"v_add_u32 v{t}, v{t}, v{t+1}")
    a.i(f"s_mul_i32 s{S_T+8}, s{S_T+6}, {32*896}")
    a.i(f"s_lshl_b32 s{S_T+9}, s{S_T+7}, 6")
    a.i(f"s_add_u32 s{S_T+8}, s{S_T+8}, s{S_T+9}")
    for g in range(4):
        a.i(f"buffer_load_dwordx2 v[{XR+2*g}:{XR+2*g+1}], v{t}, s[{SX}:{SX+3}], s{S_T+8} offen offset:{16*g}")
    for g in range(4):
        a.i(f"buffer_load_dwordx2 v[{BR+2*g}:{BR+2*g+1}], v{t+1}, s[{SB2}:{SB2+3}], s{S_T+9} offen offset:{16*g}")
    a.i(f"s_mul_i32 s{S_T+8}, s{S_WL}, {28*1024}")
    a.i(f"s_mul_i32 s{S_T}, s{S_T+4}, {112*1024}")
    a.i(f"s_add_u32 s{S_T}, s{S_T}, s{S_T+8}")
    a.i(f"s_add_u32 s{S_T}, s{S_T}, {HF}")
    a.i(f"s_add_u32 s{S_T+1}, s{S_T}, {112*1024}")
    a.i(f"s_mul_i32 s{S_T+2}, s{S_T+5}, {112*1024}")
    a.i(f"s_add_u32 s{S_T+2}, s{S_T+2}, s{S_T+8}")
    a.i(f"s_add_u32 s{S_T+2}, s{S_T+2}, {W2T}")
    a.i(f"s_add_u32 s{S_T+3}, s{S_T+2}, {112*1024}")
    a.i(f"v_mov_b32 v{VA}, v{VL16}")
    a.i(f"v_add_u32 v{VB}, 4096, v{VL16}")
    for k in range(7):
        b = FB + 16*k
        vo = VA if k < 4 else VB
        for j, so in enumerate((S_T, S_T+1, S_T+2, S_T+3)):
            a.i(f"buffer_load_dwordx4 v[{b+4*j}:{b+4*j+3}], v{vo}, s[{SWS}:{SWS+3}], s{so} offen offset:{(k&3)*1024}")
    for r in range(AF, AF+64): a.i(f"v_mov_b32 v{r}, 0")
    a.i(f"s_mov_b32 s{S_IT}, 0")
    a.label("L2_ffn_loop")
    a.i(f"v_add_u32 v{VA}, 7168, v{VA}")
    a.i(f"v_add_u32 v{VB}, 7168, v{VB}")
    for k in range(7): ffn_step(a, k, True, 24)
    a.i(f"s_add_u32 s{S_IT}, s{S_IT}, 1")
    a.i(f"s_cmp_lt_u32 s{S_IT}, 3")
    a.i("s_cbranch_scc1 L2_ffn_loop")
    for k in range(7): ffn_step(a, k, False, 24 - 4*k)
    stamp(a, 8, SWS, dbg, tmp_v=252)
    a.i(f"s_lshl_b32 s{S_T+8}, s{S_WL}, 12")
    a.i(f"s_add_u32 s{S_T+8}, s{S_T+8}, {RB}")
    a.i(f"v_add_u32 v{t}, s{S_T+8}, v{VL16}")
    a.i("s_nop 7")
    a.i("s_nop 3")
    for tile in range(4):
        for g in range(4):
            a.i(f"ds_write_b128 v{t}, v[{AF+16*tile+4*g}:{AF+16*tile+4*g+3}] offset:{tile*16384+g*1024}")
    a.i("s_waitcnt lgkmcnt(0)")
    a.i("s_barrier")
    a.i(f"s_lshl_b32 s{S_T+8}, s{S_WL}, 14")
    a.i(f"s_add_u32 s{S_T+8}, s{S_T+8}, {RB}")
    a.i(f"v_add_u32 v{t}, s{S_T+8}, v{VL16}")
    for src in range(4):
        for g in range(4):
            a.i(f"ds_read_b128 v[{AF+16*src+4*g}:{AF+16*src+4*g+3}], v{t} offset:{src*4096+g*1024}")
    a.i("s_waitcnt lgkmcnt(0)")
    for r in range(16):
        a.i(f"v_add_f32 v{AF+r}, v{AF+r}, v{AF+16+r}")
        a.i(f"v_add_f32 v{AF+32+r}, v{AF+32+r}, v{AF+48+r}")
    for r in range(16):
        a.i(f"v_add_f32 v{AF+r}, v{AF+r}, v{AF+32+r}")
    for src in (XR, BR):
        for k in range(8):
            a.i(f"v_lshlrev_b32 v{t+1}, 16, v{src+k}")
            a.i(f"v_and_b32 v{t+2}, 0xffff0000, v{src+k}")
            a.i(f"v_add_f32 v{AF+2*k}, v{AF+2*k}, v{t+1}")
            a.i(f"v_add_f32 v{AF+2*k+1}, v{AF+2*k+1}, v{t+2}")
    a.i(f"s_mul_i32 s{S_T+8}, s{S_T+6}, 14")
    a.i(f"s_add_u32 s{S_T+8}, s{S_T+8}, s{S_T+7}")
    a.i(f"s_lshl_b32 s{S_T+8}, s{S_T+8}, 12")
    a.i(f"s_add_u32 s{S_T+8}, s{S_T+8}, {FF}")
    for g in range(4):
        a.i(f"buffer_store_dwordx4 v[{AF+4*g}:{AF+4*g+3}], v{VL16}, s[{SWS}:{SWS+3}], s{S_T+8} offen offset:{1024*g} sc1")
    stamp(a, 9, SWS, dbg, tmp_v=252)
    a.i("s_endpgm")
    a.label("L2_ffn_none")
    a.i("s_barrier")
    a.i("s_endpgm")

def k2(dbg=False):
    a = Asm()
    name = "k2_kernel"
    header(a, name)
    a.i("s_cmp_ge_u32 s2, 256")
    a.i("s_cbranch_scc1 L2_end")
    a.i("s_load_dwordx16 s[16:31], s[0:1], 0")
    a.i("s_load_dwordx2 s[32:33], s[0:1], 80")
    a.i(f"s_and_b32 s{S_XCD}, s2, 7")
    a.i(f"s_lshr_b32 s{S_SLOT}, s2, 3")
    a.i(f"s_lshr_b32 s3, s{S_SLOT}, 4")
    a.i(f"s_lshl_b32 s{S_H}, s{S_XCD}, 1")
    a.i(f"s_add_u32 s{S_H}, s{S_H}, s3")
    a.i(f"s_and_b32 s{S_QB}, s{S_SLOT}, 15")
    a.i("v_lshrrev_b32 v2, 6, v0")
    a.i(f"v_and_b32 v{VL16}, 63, v0")
    a.i(f"v_readfirstlane_b32 s{S_W}, v2")
    a.i(f"v_lshlrev_b32 v{VL16}, 4, v{VL16}")
    a.i(f"s_mov_b32 s{S_HI}, 0")
    a.i(f"s_mov_b32 s{S_HI+1}, -1")
    a.i(f"s_and_b32 s{S_WL}, s{S_W}, 3")
    a.i("s_waitcnt lgkmcnt(0)")
    srd(a, SWS, 32, WS_USED + 0x400000)
    stamp(a, 4, SWS, dbg, tmp_v=252)
    a.i(f"s_cmp_ge_u32 s{S_W}, 4")
    a.i("s_cbranch_scc1 L2_ffn")
    attention(a, dbg)
    a.label("L2_ffn")
    ffn(a, dbg)
    a.label("L2_end")
    a.i("s_endpgm")
    footer(a, name, 256)
    return a

if __name__ == "__main__":
    a = k2()
    open("k2.s", "w").write('.amdgcn_target "amdgcn-amd-amdhsa--gfx950"\n' + a.text())
    errs = check(a.lines, "k2")
    print("\n".join(errs[:40])); print(len(errs), "hazard findings")
```

```python
from common import *

LDS3 = 65536
S_XCD, S_SLOT, S_W = 34, 35, 36
SWS, SOUT = 40, 44
S_T = 50
VL16 = 1
AC = 8
FB = 72
FR = 200

def mf(d, a_, b_, c_):
    cs = "0" if c_ is None else f"v[{c_}:{c_+15}]"
    return f"v_mfma_f32_32x32x16_bf16 v[{d}:{d+15}], v[{a_}:{a_+3}], v[{b_}:{b_+3}], {cs}"

def k3(dbg=False):
    a = Asm()
    name = "k3_kernel"
    t = 216
    header(a, name)
    a.i("s_cmp_ge_u32 s2, 224")
    a.i("s_cbranch_scc1 L3_end")
    a.i("s_load_dwordx2 s[30:31], s[0:1], 64")
    a.i("s_load_dwordx2 s[32:33], s[0:1], 80")
    a.i(f"s_and_b32 s{S_XCD}, s2, 7")
    a.i(f"s_lshr_b32 s{S_SLOT}, s2, 3")
    a.i("v_lshrrev_b32 v2, 6, v0")
    a.i(f"v_and_b32 v{VL16}, 63, v0")
    a.i(f"v_readfirstlane_b32 s{S_W}, v2")
    a.i(f"v_lshlrev_b32 v{VL16}, 4, v{VL16}")
    a.i(f"s_mul_i32 s{S_T+4}, s{S_SLOT}, 37")
    a.i(f"s_lshr_b32 s{S_T+4}, s{S_T+4}, 8")
    a.i(f"s_mul_i32 s{S_T+5}, s{S_T+4}, 7")
    a.i(f"s_sub_u32 s{S_T+5}, s{S_SLOT}, s{S_T+5}")
    a.i(f"s_lshl_b32 s{S_T+6}, s{S_XCD}, 2")
    a.i(f"s_add_u32 s{S_T+4}, s{S_T+4}, s{S_T+6}")
    a.i(f"s_lshl_b32 s{S_T+4}, s{S_T+4}, 1")
    a.i(f"s_lshl_b32 s{S_T+5}, s{S_T+5}, 1")
    a.i(f"s_lshr_b32 s{S_T+6}, s{S_W}, 1")
    a.i(f"s_add_u32 s{S_T+6}, s{S_T+6}, s{S_T+4}")
    a.i(f"s_and_b32 s{S_T+7}, s{S_W}, 1")
    a.i(f"s_add_u32 s{S_T+7}, s{S_T+7}, s{S_T+5}")
    a.i(f"s_lshl_b32 s{S_T+8}, s{S_W}, 13")
    a.i(f"s_lshl_b32 s{S_T}, s{S_T+4}, 15")
    a.i(f"s_add_u32 s{S_T}, s{S_T}, s{S_T+8}")
    a.i(f"s_add_u32 s{S_T}, s{S_T}, {OF}")
    a.i(f"s_add_u32 s{S_T+1}, s{S_T}, 32768")
    a.i(f"s_lshl_b32 s{S_T+2}, s{S_T+5}, 15")
    a.i(f"s_add_u32 s{S_T+2}, s{S_T+2}, s{S_T+8}")
    a.i(f"s_add_u32 s{S_T+2}, s{S_T+2}, {WOT}")
    a.i(f"s_add_u32 s{S_T+3}, s{S_T+2}, 32768")
    a.i(f"v_add_u32 v2, 4096, v{VL16}")
    a.i("s_waitcnt lgkmcnt(0)")
    srd(a, SWS, 32, WS_USED + 0x400000)
    srd(a, SOUT, 30, 2048*896)
    stamp(a, 10, SWS, dbg, tmp_v=232)
    for k in range(8):
        b = FB + 16*k
        vo = VL16 if k < 4 else 2
        for j in range(4):
            a.i(f"buffer_load_dwordx4 v[{b+4*j}:{b+4*j+3}], v{vo}, s[{SWS}:{SWS+3}], s{S_T+j} offen offset:{(k&3)*1024}")
    a.i(f"s_mul_i32 s{S_T+8}, s{S_T+6}, 14")
    a.i(f"s_add_u32 s{S_T+8}, s{S_T+8}, s{S_T+7}")
    a.i(f"s_lshl_b32 s{S_T+8}, s{S_T+8}, 12")
    a.i(f"s_add_u32 s{S_T+8}, s{S_T+8}, {FF}")
    for g in range(4):
        a.i(f"buffer_load_dwordx4 v[{FR+4*g}:{FR+4*g+3}], v{VL16}, s[{SWS}:{SWS+3}], s{S_T+8} offen offset:{1024*g}")
    for k in range(8):
        b = FB + 16*k
        a.i(f"s_waitcnt vmcnt({4*(7-k)+4})")
        for ti in range(2):
            for ci in range(2):
                d = AC + 16*(ti*2+ci)
                a.i(mf(d, b+8+4*ci, b+4*ti, d if k else None))
    a.i(f"s_lshl_b32 s{S_T+8}, s{S_W}, 12")
    a.i(f"v_add_u32 v{t}, s{S_T+8}, v{VL16}")
    a.i("s_nop 7")
    for tile in range(4):
        if tile == 3: a.i("s_nop 3")
        for g in range(4):
            a.i(f"ds_write_b128 v{t}, v[{AC+16*tile+4*g}:{AC+16*tile+4*g+3}] offset:{tile*16384+g*1024}")
    a.i("s_waitcnt lgkmcnt(0)")
    a.i("s_barrier")
    a.i(f"s_lshl_b32 s{S_T+8}, s{S_W}, 14")
    a.i(f"v_add_u32 v{t}, s{S_T+8}, v{VL16}")
    for src in range(4):
        for g in range(4):
            a.i(f"ds_read_b128 v[{AC+16*src+4*g}:{AC+16*src+4*g+3}], v{t} offset:{src*4096+g*1024}")
    a.i(f"v_and_b32 v{t+1}, 31, v0")
    a.i(f"v_mul_u32_u24 v{t+1}, 896, v{t+1}")
    a.i(f"v_bfe_u32 v{t+2}, v0, 5, 1")
    a.i(f"v_lshlrev_b32 v{t+2}, 4, v{t+2}")
    a.i(f"v_add_u32 v{t+1}, v{t+1}, v{t+2}")
    a.i(f"s_mul_i32 s{S_T+8}, s{S_T+6}, {32*896}")
    a.i(f"s_lshl_b32 s{S_T+9}, s{S_T+7}, 6")
    a.i(f"s_add_u32 s{S_T+8}, s{S_T+8}, s{S_T+9}")
    a.i("s_waitcnt vmcnt(0) lgkmcnt(0)")
    for r in range(16):
        a.i(f"v_add_f32 v{AC+r}, v{AC+r}, v{AC+16+r}")
        a.i(f"v_add_f32 v{AC+32+r}, v{AC+32+r}, v{AC+48+r}")
    for r in range(16):
        a.i(f"v_add_f32 v{AC+r}, v{AC+r}, v{FR+r}")
    for r in range(16):
        a.i(f"v_add_f32 v{AC+r}, v{AC+r}, v{AC+32+r}")
    PK = FB
    for p in range(8):
        a.i(f"v_cvt_pk_bf16_f32 v{PK+p}, v{AC+2*p}, v{AC+2*p+1}")
    a.i("s_nop 1")
    for g in (0, 2):
        a.i(f"v_permlane32_swap_b32 v{PK+2*g}, v{PK+2*g+2}")
        a.i(f"v_permlane32_swap_b32 v{PK+2*g+1}, v{PK+2*g+3}")
    a.i(f"buffer_store_dwordx4 v[{PK}:{PK+3}], v{t+1}, s[{SOUT}:{SOUT+3}], s{S_T+8} offen")
    a.i(f"buffer_store_dwordx4 v[{PK+4}:{PK+7}], v{t+1}, s[{SOUT}:{SOUT+3}], s{S_T+8} offen offset:32")
    stamp(a, 11, SWS, dbg, tmp_v=232)
    a.label("L3_end")
    a.i("s_endpgm")
    footer(a, name, 240)
    return a

if __name__ == "__main__":
    a = k3()
    open("k3.s", "w").write('.amdgcn_target "amdgcn-amd-amdhsa--gfx950"\n' + a.text())
    errs = check_all(a.lines, "k3")
    print("\n".join(errs[:40])); print(len(errs), "hazard findings")
```

```python
import sys
from common import *
import k1, k2, k3
def build(path, dbg=False):
    hdr_src = open("cdna_kernels/" + NAME + ".s.ref").read().split("\n")
    hdr = [l for l in hdr_src if l.startswith(";") and "@launch" not in l and "Override" not in l and "grid=" not in l]
    out = "\n".join(hdr) + "\n"
    out += f"; @launch kernel=k1_kernel grid=(256,1,1) block=(512,1,1) lds={k1.LDS1}\n"
    out += f"; @launch kernel=k2_kernel grid=(256,1,1) block=(512,1,1) lds={k2.LDS2}\n"
    out += f"; @launch kernel=k3_kernel grid=(224,1,1) block=(256,1,1) lds={k3.LDS3}\n"
    out += '.amdgcn_target "amdgcn-amd-amdhsa--gfx950"\n'
    nerr = 0
    for m in (k1.k1, k2.k2, k3.k3):
        a = m(dbg)
        errs = check_all(a.lines, m.__name__)
        for e in errs[:20]: print(e)
        nerr += len(errs)
        out += a.text()
    open(path, "w").write(out)
    return nerr
if __name__ == "__main__":
    dbg = "--dbg" in sys.argv
    path = [x for x in sys.argv[1:] if not x.startswith("--")]
    path = path[0] if path else "cdna_kernels/" + NAME + ".s"
    n = build(path, dbg)
    print("hazard findings:", n, "->", path)
```

```python
from asmlib import *
NAME = "parallel_sum__mha_block__dense_activation_squared_relu__prompt"
QF  = 0x000000
KF  = 0x200000
VF  = 0x400000
HF  = 0x600000
W2T = 0xD00000
WOT = 0xF00000
OF  = 0x1000000
FF  = 0x1200000
WS_USED = 0x1600000
DBGT = 0x1800000
ONES = 0x3F803F80
QSCALE = (28 ** -0.5) * 1.4426950408889634
import struct
def f2u(x): return struct.unpack("<I", struct.pack("<f", x))[0]

def srd(a, base, ptr, nbytes, off=None):
    if off is None:
        a.i(f"s_mov_b32 s{base}, s{ptr}")
        a.i(f"s_mov_b32 s{base+1}, s{ptr+1}")
    else:
        a.i(f"s_add_u32 s{base}, s{ptr}, {off}")
        a.i(f"s_addc_u32 s{base+1}, s{ptr+1}, 0")
    a.i(f"s_mov_b32 s{base+2}, {nbytes}")
    a.i(f"s_mov_b32 s{base+3}, 0x20000")

def header(a, name):
    a(f".text")
    a(f".globl {name}")
    a(f".p2align 8")
    a(f".type {name},@function")
    a(f"{name}:")

def footer(a, name, vgprs, sgprs=102):
    a(f'.section .rodata,"a"')
    a(f".p2align 6")
    a(f".amdhsa_kernel {name}")
    a(f"  .amdhsa_next_free_vgpr {vgprs}")
    a(f"  .amdhsa_next_free_sgpr {sgprs}")
    a(f"  .amdhsa_accum_offset {(vgprs+3)//4*4 if vgprs <= 256 else 256}")
    a(f"  .amdhsa_group_segment_fixed_size 0")
    a(f"  .amdhsa_kernarg_size 88")
    a(f"  .amdhsa_user_sgpr_count 2")
    a(f"  .amdhsa_user_sgpr_kernarg_segment_ptr 1")
    a(f"  .amdhsa_system_sgpr_workgroup_id_x 1")
    a(f".end_amdhsa_kernel")

def _stamp_body(a, sws, tmp_s, tmp_v):
    a.i(f"v_mov_b32 v{tmp_v}, s{tmp_s}")
    a.i(f"v_mov_b32 v{tmp_v+1}, s{tmp_s+1}")
    a.i(f"v_mov_b32 v{tmp_v+2}, s{tmp_s+4}")
    a.i(f"v_mov_b32 v{tmp_v+3}, 0")
    a.i(f"buffer_store_dwordx3 v[{tmp_v}:{tmp_v+2}], v{tmp_v+3}, s[{sws}:{sws+3}], s{tmp_s+2} offen")
    a.i("s_nop 1")

def stamp_dyn(a, sidx, base, sws, enable, tmp_s=94, tmp_v=250):
    if not enable: return
    a.i(f"s_memrealtime s[{tmp_s}:{tmp_s+1}]")
    a.i(f"s_memtime s[{tmp_s+4}:{tmp_s+5}]")
    a.i(f"s_waitcnt lgkmcnt(0)")
    a.i(f"s_lshl_b32 s{tmp_s+2}, s2, 9")
    a.i(f"s_lshl_b32 s{tmp_s+3}, s{sidx}, 4")
    a.i(f"s_add_u32 s{tmp_s+2}, s{tmp_s+2}, s{tmp_s+3}")
    a.i(f"s_add_u32 s{tmp_s+2}, s{tmp_s+2}, {DBGT + base*16}")
    _stamp_body(a, sws, tmp_s, tmp_v)

def stamp(a, idx, sws, enable, tmp_s=94, tmp_v=250):
    if not enable: return
    a.i(f"s_memrealtime s[{tmp_s}:{tmp_s+1}]")
    a.i(f"s_memtime s[{tmp_s+4}:{tmp_s+5}]")
    a.i(f"s_waitcnt lgkmcnt(0)")
    a.i(f"s_lshl_b32 s{tmp_s+2}, s2, 9")
    a.i(f"s_add_u32 s{tmp_s+2}, s{tmp_s+2}, {DBGT + idx*16}")
    _stamp_body(a, sws, tmp_s, tmp_v)
```

```python
from common import *
import os

XS   = 16384
WB   = 114688
WSL  = 14848
BTAB = WB + 3*WSL
LDS1 = 163840
P0   = 0

ACC = 16
WF  = [128, 156]
XR  = [184, 188]
XN  = [192, 196]
WAD = 200
XAD = 201
VOW = 205
VOX = 209
VSUM, VSQ = 213, 214
VR, VNM = 215, 216
VLANE16 = 217
VU = 218
PREG = 226
VDUM = 8
VT = 1

S_RT, S_G, S_TYPE, S_W, S_RS, S_P = 34, 35, 36, 37, 38, 39
SX, SW, SWS, SM = 40, 44, 48, 52
S_SOX, S_SOW, S_M0W, S_DW, S_C, S_T, S_SH, S_T0 = 56, 57, 59, 61, 62, 63, 64, 65
S_ONES = 73
S_CUR = 74
S_CW = 75
S_TMP = 76
S_TASK = 90
S_ROLE = 91
S_MASK = 92
DBG = [False]

def dma_group():
    g = [f"s_mov_b32 m0, s{S_M0W}", "s_nop 0"]
    g += [f"buffer_load_dwordx4 v{VOW+i}, s[{SW}:{SW+3}], s{S_SOW} offen offset:{1024*i} lds" for i in range(4)]
    return g

def wreads(sg, nb, ns, P):
    R = []
    for j in range(ns):
        b = WF[nb] + 4*j
        R.append(f"ds_read_b64_tr_b16 v[{b}:{b+1}], v{WAD} offset:{sg*7168 + j*P}")
        R.append(f"ds_read_b64_tr_b16 v[{b+2}:{b+3}], v{WAD} offset:{sg*7168 + j*P + 1792}")
    return R

def xread(k, buf):
    kk = (k + 2) & 3; off = XS if k >= 2 else 0
    return f"ds_read_b128 v[{XR[buf]}:{XR[buf]+3}], v{XAD+kk} offset:{off}"

def norm(src, dst):
    N = []
    for d in range(4):
        lo, hi = VU + 2*(d & 1), VU + 2*(d & 1) + 1
        lo, hi = VU + 2*d, VU + 2*d + 1
        N.append(f"v_lshlrev_b32 v{lo}, 16, v{src+d}")
        N.append(f"v_and_b32 v{hi}, s{S_MASK}, v{src+d}")
    for d in range(4):
        lo, hi = VU + 2*d, VU + 2*d + 1
        N.append(f"v_fma_f32 v{lo}, v{lo}, v{VR}, v{VNM}")
        N.append(f"v_fma_f32 v{hi}, v{hi}, v{VR}, v{VNM}")
    for d in range(4):
        lo, hi = VU + 2*d, VU + 2*d + 1
        N.append(f"v_cvt_pk_bf16_f32 v{dst+d}, v{lo}, v{hi}")
    return N

def mfmas(cb, ns, transposed):
    M = []
    for j in range(ns):
        acc = f"v[{ACC+16*j}:{ACC+16*j+15}]"
        wf = f"v[{WF[cb]+4*j}:{WF[cb]+4*j+3}]"
        xf = f"v[{XN[cb]}:{XN[cb]+3}]"
        if transposed: M.append(f"v_mfma_f32_32x32x16_bf16 {acc}, {wf}, {xf}, {acc}")
        else:          M.append(f"v_mfma_f32_32x32x16_bf16 {acc}, {xf}, {wf}, {acc}")
    return M

def interleave(a, M, fill):
    for k, m in enumerate(M):
        a.i(m)
        for f in (fill[k] if k < len(fill) else []):
            a.i(f)
    for k in range(len(M), len(fill)):
        for f in fill[k]: a.i(f)

def split(L, n):
    k, r = divmod(len(L), n)
    out = []; p = 0
    for i in range(n):
        q = k + (1 if i < r else 0)
        out.append(L[p:p+q]); p += q
    return out

def mainloop(a, tag, ns, P, transposed):
    rp = {7: [3,3,3,3,3,0,0], 6: [3,3,3,2,2,0], 5: [3,3,3,2,0]}[ns]
    vp = {7: [2,2,2,2,2,5,5], 6: [3,3,3,3,3,5], 5: [3,3,4,5,5]}[ns]
    a.label(f"L1_{tag}_loop")
    for k in range(4):
        cb = k & 1; nb = cb ^ 1
        M = mfmas(cb, ns, transposed)
        N = norm(XR[nb], XN[nb])
        last_in_group = (k & 1) == 1
        if last_in_group:
            if k == 3:
                a.i(f"s_cmp_eq_u32 s{S_C}, 6")
                a.i(f"s_cbranch_scc1 L1_{tag}_tail")
            a.i("s_waitcnt lgkmcnt(0)")
            if not os.environ.get('K1_NOBAR'): a.i("s_barrier")
            stamp_dyn(a, S_C, 16 + (k >> 1)*8, SWS, DBG[0] and os.environ.get('K1_FINE'), tmp_v=12)
            R = wreads(0, nb, ns, P)
            X = []
        else:
            a.i("s_waitcnt lgkmcnt(0)")
            R = wreads(1, nb, ns, P)
            X = []
        R = [xread(k, cb)] + R
        fill = []; ri = 0; vi = 0
        for j in range(ns):
            f = R[ri:ri+rp[j]] + N[vi:vi+vp[j]]
            ri += rp[j]; vi += vp[j]
            fill.append(f)
        assert ri == len(R) and vi == len(N), (ri, len(R), vi, len(N))
        if not last_in_group:
            fill[-1] = fill[-1] + [f"v_add_u32 v{WAD}, s{S_DW}, v{WAD}"]
            fill[-2] = fill[-2] + [f"s_add_u32 s{S_CUR}, s{S_CUR}, 1", f"s_cmp_eq_u32 s{S_CUR}, 3", f"s_cselect_b32 s{S_CUR}, 0, s{S_CUR}"]
        else:
            fill[-1] = fill[-1] + [f"s_cmp_eq_u32 s{S_CUR}, 2", f"s_cselect_b32 s{S_DW}, {(-2*WSL) & 0xffffffff}, s{S_CW}"]
            if k == 3:
                fill[-3] = fill[-3] + [f"s_add_u32 s{S_C}, s{S_C}, 1"]
                fill[-1] = fill[-1] + [f"v_add_u32 v{XAD+kk}, {XS}, v{XAD+kk}" for kk in range(4)]
        interleave(a, M, fill)
        if k == 3: a.i(f"s_branch L1_{tag}_loop")
    a.label(f"L1_{tag}_tail")
    a.i("s_waitcnt lgkmcnt(0)")
    for m in mfmas(1, ns, transposed): a.i(m)

def loader(a):
    t = VU
    for i in range(4):
        a.i(f"v_add_u32 v{t+4}, {64*i}, v{t}")
        a.i(f"v_mul_u32_u24 v{t+5}, 2341, v{t+4}")
        a.i(f"v_lshrrev_b32 v{t+5}, 16, v{t+5}")
        a.i(f"v_mul_u32_u24 v{t+6}, 28, v{t+5}")
        a.i(f"v_sub_u32 v{t+4}, v{t+4}, v{t+6}")
        a.i(f"v_lshlrev_b32 v{t+4}, 4, v{t+4}")
        a.i(f"v_mul_lo_u32 v{t+5}, v{t+5}, s{S_RS}")
        a.i(f"v_add_u32 v{t+4}, v{t+4}, v{t+5}")
        a.i(f"v_subrev_u32 v{VOW+i}, {i*1024}, v{t+4}")
    a.i(f"s_and_b32 s12, s{S_RT}, 3")
    a.i(f"s_lshl_b32 s12, s12, 2")
    a.i(f"s_add_u32 s12, s12, s{S_W}")
    a.i(f"s_lshl_b32 s12, s12, 1")
    a.i(f"s_mul_i32 s12, s12, s{S_RS}")
    a.i(f"s_add_u32 s12, s12, s10")
    for g in range(3):
        a.i(f"buffer_load_dwordx4 v[{VDUM}:{VDUM+3}], v{VOW}, s[{SW}:{SW+3}], s12 offen")
        a.i(f"s_add_u32 s12, s12, s{S_TMP}")
    a.i("s_barrier")
    for g in range(3):
        for x in dma_group(): a.i(x)
        a.i(f"s_add_u32 s{S_SOW}, s{S_SOW}, s{S_TMP}")
        if g < 2: a.i(f"s_add_u32 s{S_M0W}, s{S_M0W}, {WSL}")
        else:     a.i(f"s_sub_u32 s{S_M0W}, s{S_M0W}, {2*WSL}")
    for g in range(3, 14):
        a.i(f"buffer_load_dwordx4 v[{VDUM}:{VDUM+3}], v{VOW}, s[{SW}:{SW+3}], s12 offen")
        a.i(f"s_add_u32 s12, s12, s{S_TMP}")
    a.i("s_waitcnt vmcnt(19)")
    a.i("s_barrier")
    for g in range(13):
        if g == 0:   a.i("s_waitcnt vmcnt(15)")
        elif g == 1: a.i("s_waitcnt vmcnt(15)")
        elif g <= 10: a.i("s_waitcnt vmcnt(4)")
        elif g == 11: a.i("s_waitcnt vmcnt(4)")
        else: a.i("s_waitcnt vmcnt(2)")
        if not os.environ.get('K1_NOBAR'): a.i("s_barrier")
        if g == 11:
            a.i(f"s_cmp_lt_u32 s2, 196")
            a.i(f"s_cselect_b32 s{SM}, s28, s20")
            a.i(f"s_cselect_b32 s{SM+1}, s29, s21")
            a.i(f"s_cselect_b32 s12, 0, 196")
            a.i(f"s_mov_b32 s{SM+2}, {448*896}")
            a.i(f"s_cselect_b32 s{SM+2}, {1792*896}, s{SM+2}")
            a.i(f"s_mov_b32 s{SM+3}, 0x20000")
            a.i(f"s_sub_u32 s12, s2, s12")
            a.i(f"s_cmp_ge_u32 s2, 245")
            a.i(f"s_cselect_b32 s12, 0, s12")
            a.i(f"s_cselect_b32 s{SM+2}, 0, s{SM+2}")
            a.i(f"s_lshl_b32 s12, s12, 13")
            a.i(f"s_lshl_b32 s13, s{S_W}, 11")
            a.i(f"s_add_u32 s12, s12, s13")
            a.i(f"buffer_load_dwordx4 v[{VDUM}:{VDUM+3}], v{VLANE16}, s[{SM}:{SM+3}], s12 offen")
            a.i(f"buffer_load_dwordx4 v[{VDUM}:{VDUM+3}], v{VLANE16}, s[{SM}:{SM+3}], s12 offen offset:1024")
        if g + 3 <= 13:
            for x in dma_group(): a.i(x)
            a.i(f"s_add_u32 s{S_SOW}, s{S_SOW}, s{S_TMP}")
            if (g % 3) < 2: a.i(f"s_add_u32 s{S_M0W}, s{S_M0W}, {WSL}")
            else:           a.i(f"s_sub_u32 s{S_M0W}, s{S_M0W}, {2*WSL}")
    a.i("s_endpgm")

def store_tile(a, pk, soff):
    a.i(f"buffer_store_dwordx4 v[{pk}:{pk+3}], v{VLANE16}, s[{SWS}:{SWS+3}], s{soff} offen sc1")
    a.i(f"buffer_store_dwordx4 v[{pk+4}:{pk+7}], v{VLANE16}, s[{SWS}:{SWS+3}], s{soff} offen offset:1024 sc1")

def epi_ffn(a):
    PK = 128
    a.i(f"s_lshl_b32 s{S_TMP+2}, s{S_RT}, 2")
    a.i(f"s_add_u32 s{S_TMP+2}, s{S_TMP+2}, s{S_W}")
    a.i(f"s_mul_i32 s{S_TMP+2}, s{S_TMP+2}, {112*1024}")
    a.i(f"s_mul_i32 s{S_TMP+3}, s{S_G}, {7*2048}")
    a.i(f"s_add_u32 s{S_TMP+2}, s{S_TMP+2}, s{S_TMP+3}")
    a.i(f"s_add_u32 s{S_TMP+2}, s{S_TMP+2}, {HF}")
    a.i("s_nop 7")
    for j in range(7):
        acc = ACC + 16*j
        pk = PK + 8*(j % 3)
        for r in range(16):
            a.i(f"v_max_f32 v{acc+r}, 0, v{acc+r}")
        for p in range(8):
            a.i(f"v_pk_mul_f32 v[{acc+2*p}:{acc+2*p+1}], v[{acc+2*p}:{acc+2*p+1}], v[{acc+2*p}:{acc+2*p+1}]")
        for p in range(8):
            a.i(f"v_cvt_pk_bf16_f32 v{pk+p}, v{acc+2*p}, v{acc+2*p+1}")
        store_tile(a, pk, S_TMP+2)
        a.i(f"s_add_u32 s{S_TMP+2}, s{S_TMP+2}, 2048")

def epi_qk(a, ns, tag):
    PK = 128; t = VU
    a.i(f"s_mov_b32 s{S_TMP+9}, {f2u(QSCALE):#x}")
    a.i(f"s_mov_b32 s{S_TMP+6}, 0")
    a.i(f"s_mov_b32 s{S_TMP+7}, -1")
    a.i(f"s_lshl_b32 s{S_TMP+2}, s{S_RT}, 2")
    a.i(f"s_add_u32 s{S_TMP+2}, s{S_TMP+2}, s{S_W}")
    a.i(f"s_lshl_b32 s{S_TMP+2}, s{S_TMP+2}, 11")
    a.i(f"s_lshl_b32 s{S_TMP+3}, s{S_T0}, 17")
    a.i(f"s_add_u32 s{S_TMP+4}, s{S_TMP+3}, s{S_TMP+2}")
    a.i(f"s_mov_b32 s{S_TMP+3}, s{S_T0}")
    a.i("s_nop 7")
    for j in range(ns):
        acc = ACC + 16*j
        pk = PK + 8*(j % 3)
        a.i(f"s_cmp_ge_u32 s{S_TMP+3}, 16")
        a.i(f"s_cselect_b32 s{S_TMP+5}, 1.0, s{S_TMP+9}")
        a.i(f"s_cselect_b32 s{S_TMP+8}, {ONES:#x}, 0")
        a.i(f"v_mov_b32 v{t}, s{S_TMP+5}")
        a.i(f"v_mov_b32 v{t+2}, s{S_TMP+8}")
        a.i(f"v_lshrrev_b32 v{t+3}, 16, v{t+2}")
        for p in range(8):
            a.i(f"v_pk_mul_f32 v[{acc+2*p}:{acc+2*p+1}], v[{acc+2*p}:{acc+2*p+1}], v[{t}:{t+1}] op_sel_hi:[1,0]")
        for p in range(8):
            a.i(f"v_cvt_pk_bf16_f32 v{pk+p}, v{acc+2*p}, v{acc+2*p+1}")
        a.i(f"v_cndmask_b32 v{pk+6}, v{pk+6}, v{t+2}, s[{S_TMP+6}:{S_TMP+7}]")
        a.i(f"v_cndmask_b32 v{pk+7}, v{pk+7}, v{t+3}, s[{S_TMP+6}:{S_TMP+7}]")
        store_tile(a, pk, S_TMP+4)
        a.i(f"s_add_u32 s{S_TMP+4}, s{S_TMP+4}, {1<<17}")
        a.i(f"s_add_u32 s{S_TMP+3}, s{S_TMP+3}, 1")

def epi_v(a, ns, tag):
    PK = 128; t = VU
    a.i(f"v_and_b32 v{t}, 31, v0")
    a.i(f"v_cmp_le_u32 s[{S_TMP+6}:{S_TMP+7}], 28, v{t}")
    a.i(f"v_cmp_eq_u32 vcc, 28, v{t}")
    a.i(f"v_mov_b32 v{t+1}, 0")
    a.i(f"v_mov_b32 v{t+2}, {ONES:#x}")
    a.i(f"v_cndmask_b32 v{t+1}, v{t+1}, v{t+2}, vcc")
    a.i(f"s_lshl_b32 s{S_TMP+2}, s{S_RT}, 2")
    a.i(f"s_add_u32 s{S_TMP+2}, s{S_TMP+2}, s{S_W}")
    a.i(f"s_lshl_b32 s{S_TMP+2}, s{S_TMP+2}, 11")
    a.i(f"s_lshl_b32 s{S_TMP+3}, s{S_T0}, 17")
    a.i(f"s_add_u32 s{S_TMP+4}, s{S_TMP+3}, s{S_TMP+2}")
    a.i("s_nop 7")
    for j in range(ns):
        acc = ACC + 16*j
        pk = PK + 8*(j % 3)
        for p in range(8):
            a.i(f"v_cvt_pk_bf16_f32 v{pk+p}, v{acc+2*p}, v{acc+2*p+1}")
        for p in range(8):
            a.i(f"v_cndmask_b32 v{pk+p}, v{pk+p}, v{t+1}, s[{S_TMP+6}:{S_TMP+7}]")
        store_tile(a, pk, S_TMP+4)
        a.i(f"s_add_u32 s{S_TMP+4}, s{S_TMP+4}, {1<<17}")

def prep_process(a):
    t = VU; ti = S_TASK
    a.i(f"s_mul_i32 s{S_TMP+2}, s{S_W}, 7168")
    a.i(f"v_add_u32 v{t}, s{S_TMP+2}, v{VLANE16}")
    a.i("s_barrier")
    for i in range(7):
        a.i(f"ds_write_b128 v{t}, v[{PREG+4*i}:{PREG+4*i+3}] offset:{P0 + 1024*i}")
    a.i(f"v_and_b32 v{t+7}, 63, v0")
    a.i(f"v_lshrrev_b32 v{t+1}, 5, v{t+7}")
    a.i(f"v_lshlrev_b32 v{t+1}, 2, v{t+1}")
    a.i(f"v_bfe_u32 v{t+2}, v{t+7}, 2, 2")
    a.i(f"v_add_u32 v{t+1}, v{t+1}, v{t+2}")
    a.i(f"v_mul_u32_u24 v{t+1}, 896, v{t+1}")
    a.i(f"v_bfe_u32 v{t+2}, v{t+7}, 4, 1")
    a.i(f"v_lshlrev_b32 v{t+2}, 5, v{t+2}")
    a.i(f"v_add_u32 v{t+1}, v{t+1}, v{t+2}")
    a.i(f"v_and_b32 v{t+2}, 3, v{t+7}")
    a.i(f"v_lshlrev_b32 v{t+2}, 3, v{t+2}")
    a.i(f"v_add_u32 v{t+1}, v{t+1}, v{t+2}")
    a.i(f"s_lshl_b32 s{S_TMP+2}, s{S_W}, 6")
    a.i(f"v_add_u32 v{t+1}, s{S_TMP+2}, v{t+1}")
    a.i("s_waitcnt lgkmcnt(0)")
    a.i("s_barrier")
    a.i(f"s_cmp_ge_u32 s{ti}, 112")
    a.i(f"s_cbranch_scc1 L1_prep_wo")
    a.i(f"s_mul_i32 s{S_TMP+3}, s{S_W}, {112*1024}")
    a.i(f"s_lshl_b32 s{S_TMP+4}, s{ti}, 10")
    a.i(f"s_add_u32 s{S_TMP+3}, s{S_TMP+3}, s{S_TMP+4}")
    a.i(f"s_add_u32 s{S_TMP+3}, s{S_TMP+3}, {W2T}")
    for k in range(4):
        b = 128 + 4*k
        a.i(f"ds_read_b64_tr_b16 v[{b}:{b+1}], v{t+1} offset:{P0 + 256*k}")
        a.i(f"ds_read_b64_tr_b16 v[{b+2}:{b+3}], v{t+1} offset:{P0 + 256*k + 8*896}")
    a.i("s_waitcnt lgkmcnt(0)")
    for k in range(4):
        b = 128 + 4*k
        if k == 3:
            a.i(f"s_cmp_ge_u32 s{S_W}, 2")
            a.i(f"s_cbranch_scc1 L1_done")
        a.i(f"buffer_store_dwordx4 v[{b}:{b+3}], v{VLANE16}, s[{SWS}:{SWS+3}], s{S_TMP+3} offen sc1")
        a.i(f"s_add_u32 s{S_TMP+3}, s{S_TMP+3}, {4*112*1024}")
    a.i("s_branch L1_done")
    a.label("L1_prep_wo")
    a.i(f"s_sub_u32 s{S_TMP+4}, s{ti}, 112")
    a.i(f"s_lshl_b32 s{S_TMP+4}, s{S_TMP+4}, 11")
    a.i(f"s_lshl_b32 s{S_TMP+3}, s{S_W}, 15")
    a.i(f"s_add_u32 s{S_TMP+3}, s{S_TMP+3}, s{S_TMP+4}")
    a.i(f"s_add_u32 s{S_TMP+3}, s{S_TMP+3}, {WOT}")
    a.i(f"s_mov_b32 s{S_TMP+6}, 0")
    a.i(f"s_mov_b32 s{S_TMP+7}, -1")
    a.i(f"v_mov_b32 v{t+4}, 0")
    for k in range(4):
        b = 128 + 8*k
        a.i(f"ds_read_b64_tr_b16 v[{b}:{b+1}], v{t+1} offset:{P0 + 256*k}")
        a.i(f"ds_read_b64_tr_b16 v[{b+2}:{b+3}], v{t+1} offset:{P0 + 256*k + 8*896}")
        a.i(f"ds_read_b64_tr_b16 v[{b+4}:{b+5}], v{t+1} offset:{P0 + 256*k + 16*896}")
        a.i(f"ds_read_b64_tr_b16 v[{b+6}:{b+7}], v{t+1} offset:{P0 + 256*k + 24*896}")
    a.i("s_waitcnt lgkmcnt(0)")
    for k in range(4):
        b = 128 + 8*k
        if k == 3:
            a.i(f"s_cmp_ge_u32 s{S_W}, 2")
            a.i(f"s_cbranch_scc1 L1_done")
        a.i(f"v_cndmask_b32 v{b+6}, v{b+6}, v{t+4}, s[{S_TMP+6}:{S_TMP+7}]")
        a.i(f"v_cndmask_b32 v{b+7}, v{b+7}, v{t+4}, s[{S_TMP+6}:{S_TMP+7}]")
        a.i(f"buffer_store_dwordx4 v[{b}:{b+3}], v{VLANE16}, s[{SWS}:{SWS+3}], s{S_TMP+3} offen sc1")
        a.i(f"buffer_store_dwordx4 v[{b+4}:{b+7}], v{VLANE16}, s[{SWS}:{SWS+3}], s{S_TMP+3} offen offset:1024 sc1")
        a.i(f"s_add_u32 s{S_TMP+3}, s{S_TMP+3}, {4*32*1024}")
    a.i("s_branch L1_done")

def preloop(a, ns, P):
    for r in wreads(0, 0, ns, P): a.i(r)

def k1(dbg=False):
    a = Asm()
    DBG[0] = dbg
    name = "k1_kernel"
    header(a, name)
    a.i("s_cmp_ge_u32 s2, 256")
    a.i("s_cbranch_scc1 L1_end")
    a.i("s_load_dwordx16 s[16:31], s[0:1], 0")
    a.i("s_load_dwordx2 s[32:33], s[0:1], 80")
    t = VU
    a.i("s_and_b32 s3, s2, 7")
    a.i("s_lshr_b32 s4, s2, 3")
    a.i("s_and_b32 s5, s3, 3")
    a.i("s_lshl_b32 s5, s5, 2")
    a.i("s_and_b32 s6, s4, 3")
    a.i(f"s_add_u32 s{S_RT}, s5, s6")
    a.i("s_lshr_b32 s6, s3, 2")
    a.i("s_lshl_b32 s6, s6, 3")
    a.i("s_lshr_b32 s7, s4, 2")
    a.i("s_add_u32 s6, s6, s7")
    a.i(f"s_lshr_b32 s{S_G}, s6, 1")
    a.i("s_and_b32 s8, s6, 1")
    a.i(f"v_lshrrev_b32 v1, 6, v0")
    a.i(f"v_and_b32 v{t}, 63, v0")
    a.i(f"v_readfirstlane_b32 s{S_W}, v1")
    a.i(f"v_lshlrev_b32 v{VLANE16}, 4, v{t}")
    a.i(f"s_nop 0")
    a.i(f"s_lshr_b32 s{S_ROLE}, s{S_W}, 2")
    a.i(f"s_and_b32 s{S_W}, s{S_W}, 3")
    a.i(f"s_mov_b32 s{S_ONES}, {ONES:#x}")
    a.i(f"s_mov_b32 s{S_MASK}, 0xffff0000")
    a.i(f"s_cmp_ge_u32 s{S_G}, 5")
    a.i(f"s_cselect_b32 s{S_TYPE}, 2, 1")
    a.i(f"s_cmp_eq_u32 s8, 1")
    a.i(f"s_cselect_b32 s{S_TYPE}, 0, s{S_TYPE}")
    a.i("s_mov_b32 s10, 0x140E0700")
    a.i("s_mov_b32 s11, 0x2B26201A")
    a.i(f"s_lshl_b32 s12, s{S_G}, 3")
    a.i("s_lshr_b64 s[10:11], s[10:11], s12")
    a.i(f"s_and_b32 s{S_T0}, s10, 0xff")
    a.i("s_mov_b32 s10, 0x55666677")
    a.i(f"s_lshl_b32 s12, s{S_G}, 2")
    a.i("s_lshr_b32 s10, s10, s12")
    a.i(f"s_and_b32 s{S_T}, s10, 0xf")
    a.i(f"s_mul_i32 s10, s{S_T0}, 56")
    a.i(f"s_mul_i32 s11, s{S_G}, 448")
    a.i(f"s_movk_i32 s12, 2688")
    a.i(f"s_cmp_eq_u32 s{S_TYPE}, 0")
    a.i(f"s_cselect_b32 s10, s11, s10")
    a.i(f"s_cselect_b32 s{S_RS}, 3584, s12")
    a.i(f"s_and_b32 s{S_SH}, s10, 15")
    a.i(f"s_sub_u32 s10, s10, s{S_SH}")
    a.i(f"s_lshl_b32 s12, s{S_RT}, 7")
    a.i(f"s_lshl_b32 s13, s{S_W}, 5")
    a.i(f"s_add_u32 s12, s12, s13")
    a.i(f"s_mul_i32 s{S_SOX}, s12, 896")
    a.i(f"s_lshl_b32 s13, s{S_W}, 3")
    a.i(f"s_mul_i32 s13, s13, s{S_RS}")
    a.i(f"s_add_u32 s{S_SOW}, s13, s10")
    a.i(f"s_lshl_b32 s{S_TMP}, s{S_RS}, 5")
    a.i(f"s_mul_i32 s{S_M0W}, s{S_W}, 3584")
    a.i(f"s_add_u32 s{S_M0W}, s{S_M0W}, {WB}")
    a.i(f"v_lshrrev_b32 v{t+1}, 3, v{t}")
    a.i(f"v_lshrrev_b32 v{t+2}, 4, v{t}")
    a.i(f"v_and_b32 v{t+3}, 7, v{t}")
    a.i(f"v_mul_u32_u24 v{t+5}, 896, v{t+1}")
    for i in range(4):
        a.i(f"v_xor_b32 v{t+4}, v{t+3}, v{t+2}")
        if i & 1: a.i(f"v_xor_b32 v{t+4}, 4, v{t+4}")
        a.i(f"v_lshlrev_b32 v{t+4}, 4, v{t+4}")
        a.i(f"v_add_u32 v{t+4}, v{t+4}, v{t+5}")
        a.i(f"v_add_u32 v{VOX+i}, {8*i*896 - 1024*i}, v{t+4}")
    a.i("s_waitcnt lgkmcnt(0)")
    srd(a, SX, 16, 2048*896)
    srd(a, SWS, 32, WS_USED + 0x400000)
    a.i(f"s_cmp_eq_u32 s{S_TYPE}, 0")
    a.i(f"s_cselect_b32 s{SW}, s24, s18")
    a.i(f"s_cselect_b32 s{SW+1}, s25, s19")
    a.i(f"s_mov_b32 s{SW+2}, {448*2688}")
    a.i(f"s_cselect_b32 s{SW+2}, {448*3584}, s{SW+2}")
    a.i(f"s_mov_b32 s{SW+3}, 0x20000")
    a.i(f"s_cmp_lg_u32 s{S_ROLE}, 0")
    a.i("s_cbranch_scc1 L1_loader")
    stamp(a, 0, SWS, dbg, tmp_v=12)
    a.i(f"s_lshr_b32 s12, s2, 5")
    a.i(f"s_lshl_b32 s12, s12, 4")
    a.i(f"s_lshl_b32 s13, s{S_W}, 2")
    a.i(f"s_add_u32 s12, s12, s13")
    a.i(f"s_lshl_b32 s13, s{S_RT}, 7")
    a.i(f"s_add_u32 s12, s12, s13")
    a.i(f"s_mul_i32 s12, s12, 896")
    for i in range(4):
        a.i(f"buffer_load_dwordx4 v[{VDUM}:{VDUM+3}], v{VLANE16}, s[{SX}:{SX+3}], s12 offen offset:{min(1024*i, 2560)}")
    srd(a, SM, 26, 3584)
    a.i(f"s_cmp_eq_u32 s{S_TYPE}, 0")
    a.i(f"s_cselect_b32 s{SM+2}, s{SM+2}, 0")
    a.i(f"s_mul_i32 s12, s{S_G}, 448")
    a.i(f"v_lshlrev_b32 v2, 3, v{t}")
    a.i(f"buffer_load_dwordx2 v[4:5], v2, s[{SM}:{SM+3}], s12 offen")
    a.i(f"s_lshl_b32 s13, s{S_W}, 12")
    for c in range(7):
        a.i(f"s_add_u32 m0, s13, {c*XS}")
        if c: a.i(f"s_add_u32 s{S_SOX}, s{S_SOX}, 128")
        else: a.i("s_nop 0")
        for i in range(4):
            a.i(f"buffer_load_dwordx4 v{VOX+i}, s[{SX}:{SX+3}], s{S_SOX} offen offset:{1024*i} lds")
    a.i("s_barrier")
    stamp(a, 12, SWS, dbg, tmp_v=12)
    a.i(f"v_lshrrev_b32 v{t+1}, 5, v{t}")
    a.i(f"v_and_b32 v{t+2}, 31, v{t}")
    a.i(f"v_bfe_u32 v{t+3}, v{t+2}, 1, 3")
    a.i(f"v_lshlrev_b32 v{t+4}, 7, v{t+2}")
    a.i(f"s_lshl_b32 s12, s{S_W}, 12")
    a.i(f"v_add_u32 v{t+4}, s12, v{t+4}")
    for k in range(4):
        a.i(f"v_add_u32 v{t+5}, {2*k}, v{t+1}")
        a.i(f"v_xor_b32 v{t+5}, v{t+5}, v{t+3}")
        a.i(f"v_lshlrev_b32 v{t+5}, 4, v{t+5}")
        a.i(f"v_add_u32 v{XAD+k}, v{t+4}, v{t+5}")
    a.i(f"v_lshlrev_b32 v{t+4}, 3, v{t+1}")
    a.i(f"v_bfe_u32 v{t+5}, v{t}, 2, 2")
    a.i(f"v_add_u32 v{t+4}, v{t+4}, v{t+5}")
    a.i(f"v_mul_u32_u24 v{t+4}, 448, v{t+4}")
    a.i(f"v_bfe_u32 v{t+5}, v{t}, 4, 1")
    a.i(f"v_lshlrev_b32 v{t+5}, 5, v{t+5}")
    a.i(f"v_add_u32 v{t+4}, v{t+4}, v{t+5}")
    a.i(f"v_and_b32 v{t+5}, 3, v{t}")
    a.i(f"v_lshlrev_b32 v{t+5}, 3, v{t+5}")
    a.i(f"v_add_u32 v{t+4}, v{t+4}, v{t+5}")
    a.i(f"s_add_u32 s12, s{S_SH}, {WB}")
    a.i(f"v_add_u32 v{WAD}, s12, v{t+4}")
    a.i(f"v_mov_b32 v{VSUM}, 0")
    a.i(f"v_mov_b32 v{VSQ}, 0")
    a.i(f"s_mov_b32 s{S_C}, 0")
    a.i(f"s_mov_b32 s{S_CUR}, 0")
    a.i(f"s_mov_b32 s{S_DW}, {WSL}")
    a.i(f"s_mov_b32 s{S_CW}, {WSL}")
    a.i(f"s_cmp_eq_u32 s{S_TYPE}, 0")
    a.i("s_cbranch_scc1 L1_bias")
    for r in range(ACC, ACC+112): a.i(f"v_mov_b32 v{r}, 0")
    a.i("s_branch L1_stats")
    a.label("L1_bias")
    a.i("s_waitcnt vmcnt(28)")
    a.i(f"v_and_b32 v7, s{S_MASK}, v5")
    a.i(f"v_lshlrev_b32 v6, 16, v5")
    a.i(f"v_and_b32 v5, s{S_MASK}, v4")
    a.i(f"v_lshlrev_b32 v4, 16, v4")
    a.i(f"s_lshl_b32 s12, s{S_W}, 10")
    a.i(f"s_add_u32 s12, s12, {BTAB}")
    a.i(f"v_add_u32 v2, s12, v{VLANE16}")
    a.i(f"ds_write_b128 v2, v[4:7]")
    a.i(f"v_lshlrev_b32 v2, 4, v{t+1}")
    a.i(f"v_add_u32 v2, s12, v2")
    a.i("s_waitcnt lgkmcnt(0)")
    for j in range(7):
        for g in range(4):
            a.i(f"ds_read_b128 v[{ACC+16*j+4*g}:{ACC+16*j+4*g+3}], v2 offset:{128*j+32*g}")
        if j in (2, 5): a.i("s_waitcnt lgkmcnt(0)")
    a.label("L1_stats")
    SB = [WF[0], WF[0]+16]
    def rd(c):
        b = SB[c & 1]
        lo = c*XS
        for k in range(4):
            if lo + 0 < 65536:
                a.i(f"ds_read_b128 v[{b+4*k}:{b+4*k+3}], v{XAD+k} offset:{lo}")
            else:
                a.i(f"ds_read_b128 v[{b+4*k}:{b+4*k+3}], v{VU+k} offset:{lo-65536}")
    for k in range(4): a.i(f"v_add_u32 v{VU+k}, 65536, v{XAD+k}")
    a.i("s_waitcnt vmcnt(24)")
    rd(0)
    for c in range(7):
        if c < 6:
            a.i(f"s_waitcnt vmcnt({4*(6-(c+1))})")
            stamp(a, 16+c, SWS, dbg and os.environ.get('K1_FINE2'), tmp_v=12)
            rd(c+1)
            a.i("s_waitcnt lgkmcnt(4)")
        else:
            a.i("s_waitcnt lgkmcnt(0)")
        b = SB[c & 1]
        for d in range(16):
            a.i(f"v_dot2c_f32_bf16 v{VSUM}, s{S_ONES}, v{b+d}")
            a.i(f"v_dot2c_f32_bf16 v{VSQ}, v{b+d}, v{b+d}")
    stamp(a, 1, SWS, dbg, tmp_v=12)
    a.i(f"ds_read_b128 v[{XR[0]}:{XR[0]+3}], v{XAD}")
    a.i(f"ds_read_b128 v[{XR[1]}:{XR[1]+3}], v{XAD+1}")
    a.i(f"v_mov_b32 v{VU}, v{VSUM}")
    a.i(f"v_mov_b32 v{VU+1}, v{VSQ}")
    a.i("s_nop 1")
    a.i(f"v_permlane32_swap_b32 v{VSUM}, v{VU}")
    a.i(f"v_permlane32_swap_b32 v{VSQ}, v{VU+1}")
    a.i("s_nop 1")
    a.i(f"v_add_f32 v{VSUM}, v{VSUM}, v{VU}")
    a.i(f"v_add_f32 v{VSQ}, v{VSQ}, v{VU+1}")
    a.i(f"v_mul_f32 v{VSUM}, {f2u(1.0/448):#x}, v{VSUM}")
    a.i(f"v_mul_f32 v{VSQ}, {f2u(1.0/448):#x}, v{VSQ}")
    a.i(f"v_fma_f32 v{VSQ}, -v{VSUM}, v{VSUM}, v{VSQ}")
    a.i(f"v_max_f32 v{VSQ}, 0, v{VSQ}")
    a.i(f"v_add_f32 v{VSQ}, {f2u(1e-5):#x}, v{VSQ}")
    a.i(f"v_rsq_f32 v{VR}, v{VSQ}")
    a.i("s_nop 0")
    a.i(f"v_mul_f32 v{VNM}, v{VSUM}, v{VR}")
    a.i(f"v_sub_f32 v{VNM}, 0, v{VNM}")
    a.i("s_waitcnt lgkmcnt(0)")
    for x in norm(XR[0], XN[0]): a.i(x)
    a.i("s_barrier")
    stamp(a, 13, SWS, dbg, tmp_v=12)
    variants = [("F", 7, 64, True), ("Q7", 7, 56, True), ("Q6", 6, 56, True), ("V6", 6, 56, False), ("V5", 5, 56, False)]
    a.i(f"s_cmp_eq_u32 s{S_TYPE}, 0")
    a.i("s_cbranch_scc1 L1_go_F")
    a.i(f"s_cmp_eq_u32 s{S_TYPE}, 1")
    a.i("s_cbranch_scc0 L1_selV")
    a.i(f"s_cmp_eq_u32 s{S_T}, 7")
    a.i("s_cbranch_scc1 L1_go_Q7")
    a.i("s_branch L1_go_Q6")
    a.label("L1_selV")
    a.i(f"s_cmp_eq_u32 s{S_T}, 6")
    a.i("s_cbranch_scc1 L1_go_V6")
    a.i("s_branch L1_go_V5")
    for tag, ns, P, tr in variants:
        a.label(f"L1_go_{tag}")
        preloop(a, ns, P)
        mainloop(a, tag, ns, P, tr)
        stamp(a, 2, SWS, dbg, tmp_v=12)
        if tag == "F":
            epi_ffn(a)
            a.i("s_branch L1_done")
        elif tag[0] == "Q":
            epi_qk(a, ns, tag)
            a.i("s_branch L1_done")
        else:
            epi_v(a, ns, tag)
            a.i("s_branch L1_done")
    a.label("L1_done")
    stamp(a, 3, SWS, dbg, tmp_v=12)
    a.label("L1_end")
    a.i("s_endpgm")
    a.label("L1_loader")
    loader(a)
    footer(a, name, 256)
    return a

if __name__ == "__main__":
    a = k1()
    open("k1.s", "w").write('.amdgcn_target "amdgcn-amd-amdhsa--gfx950"\n' + a.text())
    errs = check_all(a.lines, "k1")
    print("\n".join(errs[:40])); print(len(errs), "hazard findings")
```

```python
from common import *

import os
BIAS = float(os.environ.get('K2_BIAS', '96'))
NOEXP = os.environ.get('K2_NOEXP'); NOMF = os.environ.get('K2_NOMFMA')
LDS2 = 131072
RB = 65536
Q = 8; O = 40; S = [104, 120]; P = 136; K = 144; V = 176
KT = 208; T2 = 216; T3 = 232
VL16 = 1
S_H, S_QB, S_W, S_WL, S_XCD, S_SLOT = 34, 35, 36, 37, 38, 39
SK, SV, SWS, SX, SB2 = 40, 44, 48, 52, 56
S_KO, S_VO, S_IT = 60, 61, 62
S_HI = 64
S_T = 70

def mf(d, a_, b_, c_):
    cs = "0" if c_ is None else f"v[{c_}:{c_+15}]"
    return f"v_mfma_f32_32x32x16_bf16 v[{d}:{d+15}], v[{a_}:{a_+3}], v[{b_}:{b_+3}], {cs}"

SCHED = os.environ.get('K2_SCHED', 'pair')
def step(a, tl, qt, first_skip=False):
    st = tl*4 + qt
    sb = st & 1; nb = sb ^ 1
    nq = (qt + 1) & 3; nk = tl if qt < 3 else (tl + 1) & 3
    pq = (qt - 1) & 3; pv = tl if qt > 0 else (tl - 1) & 3
    Sc = S[sb]; Sn = S[nb]
    def e(i):
        if NOEXP: a.i(f"v_mov_b32 v{Sc+i}, v{Sc+i}"); a.i(f"v_mov_b32 v{Sc+i}, v{Sc+i}")
        else: a.i(f"v_exp_f32 v{Sc+i}, v{Sc+i}")
    def c(i): a.i(f"v_cvt_pk_bf16_f32 v{P+i}, v{Sc+2*i}, v{Sc+2*i+1}")
    def m(x):
        if NOMF: a.i("s_nop 1")
        else: a.i(x)
    def kload():
        a.i(f"buffer_load_dwordx4 v[{K+8*tl}:{K+8*tl+3}], v{VL16}, s[{SK}:{SK+3}], s{S_KO} offen")
        a.i(f"buffer_load_dwordx4 v[{K+8*tl+4}:{K+8*tl+7}], v{VL16}, s[{SK}:{SK+3}], s{S_KO} offen offset:1024")
        a.i(f"s_add_u32 s{S_KO}, s{S_KO}, 2048")
    def vload():
        b = V + 8*((tl - 1) & 3)
        a.i(f"buffer_load_dwordx4 v[{b}:{b+3}], v{VL16}, s[{SV}:{SV+3}], s{S_VO} offen")
        a.i(f"buffer_load_dwordx4 v[{b+4}:{b+7}], v{VL16}, s[{SV}:{SV+3}], s{S_VO} offen offset:1024")
        a.i(f"s_add_u32 s{S_VO}, s{S_VO}, 2048")
    MS0 = mf(Sn, K+8*nk, Q+8*nq, None)
    MS1 = mf(Sn, K+8*nk+4, Q+8*nq+4, Sn)
    MP1 = mf(O+16*pq, V+8*pv+4, P+4, O+16*pq)
    MP0 = mf(O+16*qt, V+8*tl, P, O+16*qt)
    def mp1():
        if first_skip:
            a.i(f"s_cmp_eq_u32 s{S_IT}, 0")
            a.i(f"s_cbranch_scc1 L2_skip_first")
        m(MP1)
        if first_skip: a.label("L2_skip_first")
    if SCHED == 'even':
        if qt == 3: a.i("s_waitcnt vmcnt(10)")
        m(MS0)
        for i in range(0, 4): e(i)
        c(0); c(1)
        if qt == 3: kload()
        mp1()
        for i in range(4, 8): e(i)
        c(2); c(3)
        if qt == 1: vload()
        m(MS1)
        for i in range(8, 12): e(i)
        c(4); c(5)
        if qt == 0: a.i("s_waitcnt vmcnt(10)")
        m(MP0)
        for i in range(12, 16): e(i)
        c(6); c(7)
    else:
        G = int(os.environ.get('K2_GAP', '3'))
        if qt == 3: a.i("s_waitcnt vmcnt(10)")
        m(MS0)
        for i in range(0, G): e(i)
        m(MS1)
        for i in range(G, 8): e(i)
        c(0); c(1); c(2); c(3)
        if qt == 3: kload()
        if qt == 1: vload()
        mp1()
        for i in range(8, 8+G): e(i)
        if qt == 0: a.i("s_waitcnt vmcnt(10)")
        m(MP0)
        for i in range(8+G, 16): e(i)
        c(4); c(5); c(6); c(7)

def rowmax16(a, src, dst):
    a.i(f"v_max3_f32 v{dst}, v{src}, v{src+1}, v{src+2}")
    for k in range(3, 15, 2):
        a.i(f"v_max3_f32 v{dst}, v{dst}, v{src+k}, v{src+k+1}")
    a.i(f"v_max_f32 v{dst}, v{dst}, v{src+15}")

def attention(a, dbg):
    t = 248
    if os.environ.get('K2_PRIO', '1') != '0': a.i(f"s_setprio {os.environ.get('K2_PRIO', '1')}")
    a.i(f"s_lshl_b32 s{S_T}, s{S_H}, 6")
    a.i(f"s_lshl_b32 s{S_T+1}, s{S_WL}, 4")
    a.i(f"s_add_u32 s{S_T}, s{S_T}, s{S_T+1}")
    a.i(f"s_lshl_b32 s{S_T}, s{S_T}, 11")
    a.i(f"s_add_u32 s{S_T+1}, s{S_T}, {KF}")
    srd(a, SK, 32, 32768, off=f"s{S_T+1}")
    a.i(f"s_add_u32 s{S_T+1}, s{S_T}, {VF}")
    srd(a, SV, 32, 32768, off=f"s{S_T+1}")
    a.i(f"s_lshl_b32 s{S_T}, s{S_H}, 6")
    a.i(f"s_lshl_b32 s{S_T+1}, s{S_QB}, 2")
    a.i(f"s_add_u32 s{S_T}, s{S_T}, s{S_T+1}")
    a.i(f"s_lshl_b32 s{S_T}, s{S_T}, 11")
    a.i(f"s_add_u32 s{S_T+2}, s{S_T}, {QF}")
    a.i(f"s_add_u32 s{S_T+3}, s{S_T+2}, 4096")
    for qt in range(4):
        so = S_T+2 if qt < 2 else S_T+3
        for h in range(2):
            a.i(f"buffer_load_dwordx4 v[{Q+8*qt+4*h}:{Q+8*qt+4*h+3}], v{VL16}, s[{SWS}:{SWS+3}], s{so} offen offset:{(qt&1)*2048+h*1024}")
    a.i(f"s_lshl_b32 s{S_T+4}, s{S_H}, 17")
    a.i(f"s_add_u32 s{S_T+4}, s{S_T+4}, {KF}")
    a.i(f"buffer_load_dwordx4 v[{KT}:{KT+3}], v{VL16}, s[{SWS}:{SWS+3}], s{S_T+4} offen")
    a.i(f"buffer_load_dwordx4 v[{KT+4}:{KT+7}], v{VL16}, s[{SWS}:{SWS+3}], s{S_T+4} offen offset:1024")
    a.i(f"s_mov_b32 s{S_KO}, 0")
    for i in range(4):
        a.i(f"buffer_load_dwordx4 v[{K+8*i}:{K+8*i+3}], v{VL16}, s[{SK}:{SK+3}], s{S_KO} offen")
        a.i(f"buffer_load_dwordx4 v[{K+8*i+4}:{K+8*i+7}], v{VL16}, s[{SK}:{SK+3}], s{S_KO} offen offset:1024")
        if i < 3:
            a.i(f"buffer_load_dwordx4 v[{V+8*i}:{V+8*i+3}], v{VL16}, s[{SV}:{SV+3}], s{S_KO} offen")
            a.i(f"buffer_load_dwordx4 v[{V+8*i+4}:{V+8*i+7}], v{VL16}, s[{SV}:{SV+3}], s{S_KO} offen offset:1024")
        a.i(f"s_add_u32 s{S_KO}, s{S_KO}, 2048")
    a.i(f"s_mov_b32 s{S_VO}, {3*2048}")
    for r in range(O, O+64): a.i(f"v_mov_b32 v{r}, 0")
    a.i(f"s_mov_b32 s{S_IT}, 0")
    a.i("s_waitcnt vmcnt(14)")
    TD = [S[0], S[1], T2, T3]
    for qt in range(4): a.i(mf(TD[qt], KT, Q+8*qt, None))
    for qt in range(4): a.i(mf(TD[qt], KT+4, Q+8*qt+4, TD[qt]))
    a.i("s_nop 8")
    for qt in range(4):
        rowmax16(a, TD[qt], t+qt)
    for qt in range(4): a.i(f"v_mov_b32 v{t+4+qt}, v{t+qt}")
    a.i("s_nop 1")
    for qt in range(4): a.i(f"v_permlane32_swap_b32 v{t+qt}, v{t+4+qt}")
    a.i("s_nop 1")
    for qt in range(4): a.i(f"v_max_f32 v{t+qt}, v{t+qt}, v{t+4+qt}")
    for qt in range(4): a.i(f"v_sub_f32 v{t+qt}, {f2u(-BIAS):#x}, v{t+qt}")
    for qt in range(4): a.i(f"v_cvt_pk_bf16_f32 v{t+qt}, v{t+qt}, 0")
    for qt in range(4): a.i(f"v_cndmask_b32 v{Q+8*qt+6}, v{Q+8*qt+6}, v{t+qt}, s[{S_HI}:{S_HI+1}]")
    a.i("s_waitcnt vmcnt(12)")
    a.i(mf(S[0], K, Q, None))
    a.i(mf(S[0], K+4, Q+4, S[0]))
    a.i("s_nop 7")
    a.i("s_nop 3")
    stamp(a, 5, SWS, dbg, tmp_v=252)
    a.label("L2_loop")
    for tl in range(4):
        for qt in range(4):
            step(a, tl, qt, first_skip=(tl == 0 and qt == 0))
    a.i(f"s_add_u32 s{S_IT}, s{S_IT}, 1")
    a.i(f"s_cmp_lt_u32 s{S_IT}, 4")
    a.i("s_cbranch_scc1 L2_loop")
    a.i("s_nop 1")
    a.i(mf(O+48, V+8*3+4, P+4, O+48))
    stamp(a, 6, SWS, dbg, tmp_v=252)
    a.i(f"s_lshl_b32 s{S_T}, s{S_WL}, 12")
    a.i(f"v_add_u32 v{t}, s{S_T}, v{VL16}")
    for qt in range(4):
        if qt == 3:
            a.i("s_nop 7")
        for g in range(4):
            a.i(f"ds_write_b128 v{t}, v[{O+16*qt+4*g}:{O+16*qt+4*g+3}] offset:{qt*16384+g*1024}")
    a.i("s_waitcnt vmcnt(0) lgkmcnt(0)")
    a.i("s_barrier")
    a.i(f"s_lshl_b32 s{S_T}, s{S_WL}, 14")
    a.i(f"v_add_u32 v{t}, s{S_T}, v{VL16}")
    for src in range(4):
        for g in range(4):
            a.i(f"ds_read_b128 v[{O+16*src+4*g}:{O+16*src+4*g+3}], v{t} offset:{src*4096+g*1024}")
    a.i("s_waitcnt lgkmcnt(0)")
    for r in range(16):
        a.i(f"v_add_f32 v{O+r}, v{O+r}, v{O+16+r}")
        a.i(f"v_add_f32 v{O+32+r}, v{O+32+r}, v{O+48+r}")
    for r in range(16):
        a.i(f"v_add_f32 v{O+r}, v{O+r}, v{O+32+r}")
    a.i(f"s_mov_b32 s{S_T+6}, 0")
    a.label("L2_norm")
    a.i(f"v_mov_b32 v{t}, v{O+12}")
    a.i(f"v_mov_b32 v{t+1}, v{O+12}")
    a.i("s_nop 1")
    a.i(f"v_permlane32_swap_b32 v{t}, v{t+1}")
    a.i("s_nop 1")
    a.i(f"v_rcp_f32 v{t+2}, v{t+1}")
    a.i("s_nop 0")
    for r in range(16):
        a.i(f"v_mul_f32 v{O+r}, v{O+r}, v{t+2}")
    a.i(f"s_cmp_lg_u32 s{S_T+6}, 0")
    a.i("s_cbranch_scc1 L2_store")
    a.i(f"v_mov_b32 v{t+3}, {f2u(2.0**-100):#x}")
    a.i(f"v_mov_b32 v{t+4}, {f2u(2.0**120):#x}")
    a.i(f"v_cmp_nge_f32 vcc, v{t+1}, v{t+3}")
    a.i(f"v_cmp_nle_f32 s[{S_T+8}:{S_T+9}], v{t+1}, v{t+4}")
    a.i(f"s_or_b64 s[{S_T+8}:{S_T+9}], s[{S_T+8}:{S_T+9}], vcc")
    a.i(f"v_mul_f32 v{t+5}, 0, v{O}")
    for r in range(1, 16):
        a.i(f"v_fma_f32 v{t+5}, v{O+r}, 0, v{t+5}")
    a.i(f"v_cmp_u_f32 vcc, v{t+5}, v{t+5}")
    a.i(f"s_or_b64 s[{S_T+8}:{S_T+9}], s[{S_T+8}:{S_T+9}], vcc")
    a.i(f"s_cmp_lg_u64 s[{S_T+8}:{S_T+9}], 0")
    a.i("s_cbranch_scc1 L2_slow")
    a.label("L2_store")
    for p in range(8):
        a.i(f"v_cvt_pk_bf16_f32 v{P+p}, v{O+2*p}, v{O+2*p+1}")
    a.i(f"s_lshl_b32 s{S_T}, s{S_QB}, 2")
    a.i(f"s_add_u32 s{S_T}, s{S_T}, s{S_WL}")
    a.i(f"s_lshl_b32 s{S_T}, s{S_T}, 4")
    a.i(f"s_add_u32 s{S_T}, s{S_T}, s{S_H}")
    a.i(f"s_lshl_b32 s{S_T}, s{S_T}, 11")
    a.i(f"s_add_u32 s{S_T}, s{S_T}, {OF}")
    a.i(f"buffer_store_dwordx4 v[{P}:{P+3}], v{VL16}, s[{SWS}:{SWS+3}], s{S_T} offen sc1")
    a.i(f"buffer_store_dwordx4 v[{P+4}:{P+7}], v{VL16}, s[{SWS}:{SWS+3}], s{S_T} offen offset:1024 sc1")
    stamp(a, 7, SWS, dbg, tmp_v=252)
    a.i("s_endpgm")
    a.label("L2_slow")
    a.i(f"s_lshl_b32 s{S_T}, s{S_WL}, 11")
    a.i(f"s_add_u32 s{S_T}, s{S_T}, s{S_T+2}")
    a.i(f"buffer_load_dwordx4 v[{Q}:{Q+3}], v{VL16}, s[{SWS}:{SWS+3}], s{S_T} offen")
    a.i(f"buffer_load_dwordx4 v[{Q+4}:{Q+7}], v{VL16}, s[{SWS}:{SWS+3}], s{S_T} offen offset:1024")
    a.i(f"v_mov_b32 v{t}, 0xff800000")
    a.i(f"s_mov_b32 s{S_T+1}, s{S_T+4}")
    a.i(f"s_mov_b32 s{S_IT}, 0")
    a.label("L2_slow1")
    a.i(f"buffer_load_dwordx4 v[{KT}:{KT+3}], v{VL16}, s[{SWS}:{SWS+3}], s{S_T+1} offen")
    a.i(f"buffer_load_dwordx4 v[{KT+4}:{KT+7}], v{VL16}, s[{SWS}:{SWS+3}], s{S_T+1} offen offset:1024")
    a.i("s_waitcnt vmcnt(0)")
    a.i(mf(S[0], KT, Q, None))
    a.i(mf(S[0], KT+4, Q+4, S[0]))
    a.i("s_nop 7")
    a.i("s_nop 3")
    rowmax16(a, S[0], t+1)
    a.i(f"v_max_f32 v{t}, v{t}, v{t+1}")
    a.i(f"s_add_u32 s{S_T+1}, s{S_T+1}, 2048")
    a.i(f"s_add_u32 s{S_IT}, s{S_IT}, 1")
    a.i(f"s_cmp_lt_u32 s{S_IT}, 64")
    a.i("s_cbranch_scc1 L2_slow1")
    a.i(f"v_mov_b32 v{t+1}, v{t}")
    a.i("s_nop 1")
    a.i(f"v_permlane32_swap_b32 v{t}, v{t+1}")
    a.i("s_nop 1")
    a.i(f"v_max_f32 v{t}, v{t}, v{t+1}")
    a.i(f"v_sub_f32 v{t}, 0, v{t}")
    a.i(f"v_cvt_pk_bf16_f32 v{t+1}, v{t}, 0")
    a.i(f"v_lshlrev_b32 v{t+2}, 16, v{t+1}")
    a.i(f"v_sub_f32 v{t+3}, v{t}, v{t+2}")
    a.i(f"v_cvt_pk_bf16_f32 v{t+4}, v{t+3}, 0")
    a.i(f"v_lshlrev_b32 v{t+5}, 16, v{t+4}")
    a.i(f"v_sub_f32 v{t+3}, v{t+3}, v{t+5}")
    a.i(f"v_cvt_pk_bf16_f32 v{t+6}, v{t+3}, 0")
    a.i(f"v_or_b32 v{t+1}, v{t+1}, v{t+5}")
    a.i(f"v_cndmask_b32 v{Q+6}, v{Q+6}, v{t+1}, s[{S_HI}:{S_HI+1}]")
    a.i(f"v_cndmask_b32 v{Q+7}, v{Q+7}, v{t+6}, s[{S_HI}:{S_HI+1}]")
    for r in range(O, O+16): a.i(f"v_mov_b32 v{r}, 0")
    a.i(f"s_mov_b32 s{S_T+1}, s{S_T+4}")
    a.i(f"s_mov_b32 s{S_IT}, 0")
    a.label("L2_slow2")
    a.i(f"s_add_u32 s{S_T}, s{S_T+1}, {VF-KF}")
    a.i(f"buffer_load_dwordx4 v[{KT}:{KT+3}], v{VL16}, s[{SWS}:{SWS+3}], s{S_T+1} offen")
    a.i(f"buffer_load_dwordx4 v[{KT+4}:{KT+7}], v{VL16}, s[{SWS}:{SWS+3}], s{S_T+1} offen offset:1024")
    a.i(f"buffer_load_dwordx4 v[{T2}:{T2+3}], v{VL16}, s[{SWS}:{SWS+3}], s{S_T} offen")
    a.i(f"buffer_load_dwordx4 v[{T2+4}:{T2+7}], v{VL16}, s[{SWS}:{SWS+3}], s{S_T} offen offset:1024")
    a.i("s_waitcnt vmcnt(0)")
    a.i(mf(S[0], KT, Q, None))
    a.i(mf(S[0], KT+4, Q+4, S[0]))
    a.i("s_nop 7")
    a.i("s_nop 3")
    for i in range(16): a.i(f"v_exp_f32 v{S[0]+i}, v{S[0]+i}")
    a.i("s_nop 0")
    for i in range(8): a.i(f"v_cvt_pk_bf16_f32 v{P+i}, v{S[0]+2*i}, v{S[0]+2*i+1}")
    a.i("s_nop 1")
    a.i(mf(O, T2, P, O))
    a.i(mf(O, T2+4, P+4, O))
    a.i(f"s_add_u32 s{S_T+1}, s{S_T+1}, 2048")
    a.i(f"s_add_u32 s{S_IT}, s{S_IT}, 1")
    a.i(f"s_cmp_lt_u32 s{S_IT}, 64")
    a.i("s_cbranch_scc1 L2_slow2")
    a.i("s_nop 7")
    a.i("s_nop 7")
    a.i(f"s_mov_b32 s{S_T+6}, 1")
    a.i("s_branch L2_norm")

AF = 8
HB = 72
WFB = [128, 136]
XR = 144
BR = 152
VA = 160
VW1, VW2 = 161, 162
VT0, VT1 = 163, 164
SW2 = 60
S_M0 = 66; S_WO = 67; S_H0 = 68; S_H1 = 69

def w2_lane_setup(a, t):
    a.i(f"v_and_b32 v{t}, 63, v0")
    a.i(f"v_lshrrev_b32 v{t+1}, 3, v{t}")
    a.i(f"v_bfe_u32 v{t+2}, v{t}, 4, 1")
    a.i(f"v_lshlrev_b32 v{t+2}, 2, v{t+2}")
    a.i(f"v_and_b32 v{t+3}, 7, v{t}")
    a.i(f"v_xor_b32 v{t+3}, v{t+3}, v{t+2}")
    a.i(f"v_lshlrev_b32 v{t+3}, 4, v{t+3}")
    a.i(f"v_mul_u32_u24 v{t+1}, 896, v{t+1}")
    a.i(f"v_add_u32 v{VW1}, v{t+1}, v{t+3}")
    a.i(f"v_add_u32 v{VW2}, {8*896 - 1024}, v{VW1}")
    a.i(f"v_lshrrev_b32 v{t+1}, 5, v{t}")
    a.i(f"v_lshlrev_b32 v{t+1}, 2, v{t+1}")
    a.i(f"v_bfe_u32 v{t+2}, v{t}, 2, 2")
    a.i(f"v_add_u32 v{t+1}, v{t+1}, v{t+2}")
    a.i(f"v_lshlrev_b32 v{t+1}, 7, v{t+1}")
    a.i(f"v_lshrrev_b32 v{t+2}, 1, v{t+2}")
    a.i(f"v_lshlrev_b32 v{t+2}, 6, v{t+2}")
    a.i(f"v_add_u32 v{t+1}, v{t+1}, v{t+2}")
    a.i(f"v_bfe_u32 v{t+2}, v{t}, 4, 1")
    a.i(f"v_lshlrev_b32 v{t+2}, 5, v{t+2}")
    a.i(f"v_add_u32 v{t+1}, v{t+1}, v{t+2}")
    a.i(f"v_and_b32 v{t+2}, 3, v{t}")
    a.i(f"v_lshlrev_b32 v{t+2}, 3, v{t+2}")
    a.i(f"v_add_u32 v{t+1}, v{t+1}, v{t+2}")
    a.i(f"v_add_u32 v{VT0}, s{S_M0}, v{t+1}")
    a.i(f"v_xor_b32 v{VT1}, 64, v{VT0}")

def ffn_issue(a, k):
    b = HB + 8*(k % 7)
    a.i(f"s_add_u32 m0, s{S_M0}, {2048*(k % 7)}")
    a.i(f"buffer_load_dwordx4 v[{b}:{b+3}], v{VA}, s[{SWS}:{SWS+3}], s{S_H0} offen")
    a.i(f"buffer_load_dwordx4 v[{b+4}:{b+7}], v{VA}, s[{SWS}:{SWS+3}], s{S_H1} offen")
    a.i(f"buffer_load_dwordx4 v{VW1}, s[{SW2}:{SW2+3}], s{S_WO} offen lds")
    a.i(f"buffer_load_dwordx4 v{VW2}, s[{SW2}:{SW2+3}], s{S_WO} offen offset:1024 lds")
    a.i(f"v_add_u32 v{VA}, 1024, v{VA}")
    a.i(f"s_add_u32 s{S_WO}, s{S_WO}, {16*896}")

def ffn_trreads(a, k):
    w = WFB[k & 1]; off = 2048*(k % 7)
    for ci, va in enumerate((VT0, VT1)):
        a.i(f"ds_read_b64_tr_b16 v[{w+4*ci}:{w+4*ci+1}], v{va} offset:{off}")
        a.i(f"ds_read_b64_tr_b16 v[{w+4*ci+2}:{w+4*ci+3}], v{va} offset:{off+1024}")

def wo_prep(a, t):
    a.i(f"s_lshl_b32 s{S_T}, s{S_XCD}, 2")
    a.i(f"s_add_u32 s{S_T}, s{S_T}, s{S_SLOT}")
    a.i(f"s_sub_u32 s{S_T}, s{S_T}, 28")
    a.i(f"s_lshl_b32 s{S_T}, s{S_T}, 2")
    a.i(f"s_add_u32 s{S_T}, s{S_T}, s{S_WL}")
    a.i(f"s_cmp_ge_u32 s{S_T}, 112")
    a.i("s_cbranch_scc1 L2_ffn_none")
    a.i(f"s_mul_i32 s{S_T+1}, s{S_T}, 147")
    a.i(f"s_lshr_b32 s{S_T+1}, s{S_T+1}, 10")
    a.i(f"s_mul_i32 s{S_T+2}, s{S_T+1}, 7")
    a.i(f"s_sub_u32 s{S_T+2}, s{S_T}, s{S_T+2}")
    srd(a, SW2, 20, 448*896)
    a.i(f"s_mul_i32 s{S_WO}, s{S_T+1}, {28*896}")
    a.i(f"s_lshl_b32 s{S_T+3}, s{S_T+2}, 7")
    a.i(f"s_add_u32 s{S_WO}, s{S_WO}, s{S_T+3}")
    for k in range(2):
        a.i(f"s_add_u32 m0, s{S_M0}, {2048*k}")
        a.i("s_nop 0")
        a.i(f"buffer_load_dwordx4 v{VW1}, s[{SW2}:{SW2+3}], s{S_WO} offen lds")
        a.i(f"buffer_load_dwordx4 v{VW2}, s[{SW2}:{SW2+3}], s{S_WO} offen offset:1024 lds")
        a.i(f"s_add_u32 s{S_WO}, s{S_WO}, {16*896}")
    a.i("s_waitcnt vmcnt(0)")
    ffn_trreads(a, 0)
    ffn_trreads(a, 1)
    a.i(f"v_mov_b32 v{t+4}, 0")
    a.i("s_waitcnt lgkmcnt(0)")
    for ci in range(2):
        a.i(f"v_cndmask_b32 v{WFB[1]+4*ci+2}, v{WFB[1]+4*ci+2}, v{t+4}, s[{S_HI}:{S_HI+1}]")
        a.i(f"v_cndmask_b32 v{WFB[1]+4*ci+3}, v{WFB[1]+4*ci+3}, v{t+4}, s[{S_HI}:{S_HI+1}]")
    a.i(f"s_lshl_b32 s{S_T+3}, s{S_T+2}, 16")
    a.i(f"s_lshl_b32 s{S_T+4}, s{S_T+1}, 11")
    a.i(f"s_add_u32 s{S_T+3}, s{S_T+3}, s{S_T+4}")
    a.i(f"s_add_u32 s{S_T+3}, s{S_T+3}, {WOT}")
    a.i(f"s_add_u32 s{S_T+4}, s{S_T+3}, 32768")
    for ci, so in enumerate((S_T+3, S_T+4)):
        a.i(f"buffer_store_dwordx4 v[{WFB[0]+4*ci}:{WFB[0]+4*ci+3}], v{VL16}, s[{SWS}:{SWS+3}], s{so} offen sc1")
        a.i(f"buffer_store_dwordx4 v[{WFB[1]+4*ci}:{WFB[1]+4*ci+3}], v{VL16}, s[{SWS}:{SWS+3}], s{so} offen offset:1024 sc1")
    a.i("s_branch L2_ffn_none")

def ffn(a, dbg):
    t = 248
    for task in range(128): assert (task*147) >> 10 == task // 7
    for q_ in range(32): assert (q_*37) >> 8 == q_ // 7
    a.i(f"s_lshl_b32 s{S_M0}, s{S_WL}, 14")
    a.i(f"s_add_u32 s{S_M0}, s{S_M0}, {RB}")
    w2_lane_setup(a, t)
    a.i(f"s_cmp_ge_u32 s{S_SLOT}, {0 if os.environ.get('K2_NOFFN') else 28}")
    a.i("s_cbranch_scc1 L2_wo_prep")
    a.i(f"s_mul_i32 s{S_T+4}, s{S_SLOT}, 37")
    a.i(f"s_lshr_b32 s{S_T+4}, s{S_T+4}, 8")
    a.i(f"s_mul_i32 s{S_T+5}, s{S_T+4}, 7")
    a.i(f"s_sub_u32 s{S_T+5}, s{S_SLOT}, s{S_T+5}")
    a.i(f"s_lshl_b32 s{S_T+9}, s{S_T+5}, 7")
    a.i(f"s_lshl_b32 s{S_T+6}, s{S_XCD}, 2")
    a.i(f"s_add_u32 s{S_T+4}, s{S_T+4}, s{S_T+6}")
    a.i(f"s_lshl_b32 s{S_T+4}, s{S_T+4}, 1")
    a.i(f"s_lshl_b32 s{S_T+5}, s{S_T+5}, 1")
    a.i(f"s_lshr_b32 s{S_T+6}, s{S_WL}, 1")
    a.i(f"s_add_u32 s{S_T+6}, s{S_T+6}, s{S_T+4}")
    a.i(f"s_and_b32 s{S_T+7}, s{S_WL}, 1")
    a.i(f"s_add_u32 s{S_T+7}, s{S_T+7}, s{S_T+5}")
    a.i(f"s_mul_i32 s{S_T+8}, s{S_WL}, {28*1024}")
    a.i(f"s_mul_i32 s{S_H0}, s{S_T+4}, {112*1024}")
    a.i(f"s_add_u32 s{S_H0}, s{S_H0}, s{S_T+8}")
    a.i(f"s_add_u32 s{S_H0}, s{S_H0}, {HF}")
    a.i(f"s_add_u32 s{S_H1}, s{S_H0}, {112*1024}")
    srd(a, SW2, 28, 1792*896)
    a.i(f"s_mul_i32 s{S_WO}, s{S_WL}, {448*896}")
    a.i(f"s_add_u32 s{S_WO}, s{S_WO}, s{S_T+9}")
    a.i(f"v_mov_b32 v{VA}, v{VL16}")
    if int(os.environ.get('K2_FDELAY', '6')): a.i(f"s_sleep {int(os.environ.get('K2_FDELAY', '6'))}")
    for k in range(7): ffn_issue(a, k)
    srd(a, SX, 16, 2048*896)
    srd(a, SB2, 30, 896)
    a.i(f"v_and_b32 v{t}, 31, v0")
    a.i(f"v_mul_u32_u24 v{t}, 896, v{t}")
    a.i(f"v_bfe_u32 v{t+1}, v0, 5, 1")
    a.i(f"v_lshlrev_b32 v{t+1}, 3, v{t+1}")
    a.i(f"v_add_u32 v{t}, v{t}, v{t+1}")
    a.i(f"s_mul_i32 s{S_T+8}, s{S_T+6}, {32*896}")
    a.i(f"s_lshl_b32 s{S_T+9}, s{S_T+7}, 6")
    a.i(f"s_add_u32 s{S_T+8}, s{S_T+8}, s{S_T+9}")
    for r in range(AF, AF+64): a.i(f"v_mov_b32 v{r}, 0")
    a.i("s_waitcnt vmcnt(24)")
    ffn_trreads(a, 0)
    nout = 24
    for k in range(28):
        last = min(k + 6, 27)
        extra = 8 if k > 21 else 0
        if k + 1 <= 27:
            a.i(f"s_waitcnt vmcnt({4*(last - (k+1)) + extra})")
            ffn_trreads(a, k + 1)
            a.i("s_waitcnt lgkmcnt(4)")
        else:
            a.i("s_waitcnt lgkmcnt(0)")
        b = HB + 8*(k % 7); w = WFB[k & 1]
        for ti in range(2):
            for ci in range(2):
                d = AF + 16*(ti*2+ci)
                a.i(mf(d, w+4*ci, b+4*ti, d))
        if k + 7 <= 27: ffn_issue(a, k + 7)
        if k == 21:
            for g in range(4):
                a.i(f"buffer_load_dwordx2 v[{XR+2*g}:{XR+2*g+1}], v{t}, s[{SX}:{SX+3}], s{S_T+8} offen offset:{16*g}")
            for g in range(4):
                a.i(f"buffer_load_dwordx2 v[{BR+2*g}:{BR+2*g+1}], v{t+1}, s[{SB2}:{SB2+3}], s{S_T+9} offen offset:{16*g}")
    stamp(a, 8, SWS, dbg, tmp_v=252)
    a.i(f"v_add_u32 v{t+2}, s{S_M0}, v{VL16}")
    a.i("s_nop 7")
    a.i("s_nop 3")
    for tile in range(4):
        for g in range(4):
            a.i(f"ds_write_b128 v{t+2}, v[{AF+16*tile+4*g}:{AF+16*tile+4*g+3}] offset:{tile*4096+g*1024}")
    a.i("s_waitcnt vmcnt(0) lgkmcnt(0)")
    a.i("s_barrier")
    a.i(f"s_lshl_b32 s{S_T+8}, s{S_WL}, 12")
    a.i(f"s_add_u32 s{S_T+8}, s{S_T+8}, {RB}")
    a.i(f"v_add_u32 v{t+2}, s{S_T+8}, v{VL16}")
    for src in range(4):
        for g in range(4):
            a.i(f"ds_read_b128 v[{AF+16*src+4*g}:{AF+16*src+4*g+3}], v{t+2} offset:{src*16384+g*1024}")
        if src == 2: a.i("s_waitcnt lgkmcnt(0)")
    a.i("s_waitcnt lgkmcnt(0)")
    for r in range(16):
        a.i(f"v_add_f32 v{AF+r}, v{AF+r}, v{AF+16+r}")
        a.i(f"v_add_f32 v{AF+32+r}, v{AF+32+r}, v{AF+48+r}")
    for r in range(16):
        a.i(f"v_add_f32 v{AF+r}, v{AF+r}, v{AF+32+r}")
    for src in (XR, BR):
        for k in range(8):
            a.i(f"v_lshlrev_b32 v{t+3}, 16, v{src+k}")
            a.i(f"v_and_b32 v{t+4}, 0xffff0000, v{src+k}")
            a.i(f"v_add_f32 v{AF+2*k}, v{AF+2*k}, v{t+3}")
            a.i(f"v_add_f32 v{AF+2*k+1}, v{AF+2*k+1}, v{t+4}")
    a.i(f"s_mul_i32 s{S_T+8}, s{S_T+6}, 14")
    a.i(f"s_add_u32 s{S_T+8}, s{S_T+8}, s{S_T+7}")
    a.i(f"s_lshl_b32 s{S_T+8}, s{S_T+8}, 12")
    a.i(f"s_add_u32 s{S_T+8}, s{S_T+8}, {FF}")
    for g in range(4):
        a.i(f"buffer_store_dwordx4 v[{AF+4*g}:{AF+4*g+3}], v{VL16}, s[{SWS}:{SWS+3}], s{S_T+8} offen offset:{1024*g} sc1")
    stamp(a, 9, SWS, dbg, tmp_v=252)
    a.i("s_endpgm")
    a.label("L2_wo_prep")
    wo_prep(a, t)
    a.label("L2_ffn_none")
    a.i("s_barrier")
    a.i("s_endpgm")

def k2(dbg=False):
    a = Asm()
    name = "k2_kernel"
    header(a, name)
    a.i("s_cmp_ge_u32 s2, 256")
    a.i("s_cbranch_scc1 L2_end")
    a.i("s_load_dwordx16 s[16:31], s[0:1], 0")
    a.i("s_load_dwordx2 s[32:33], s[0:1], 80")
    a.i(f"s_and_b32 s{S_XCD}, s2, 7")
    a.i(f"s_lshr_b32 s{S_SLOT}, s2, 3")
    a.i(f"s_lshr_b32 s3, s{S_SLOT}, 4")
    a.i(f"s_lshl_b32 s{S_H}, s{S_XCD}, 1")
    a.i(f"s_add_u32 s{S_H}, s{S_H}, s3")
    a.i(f"s_and_b32 s{S_QB}, s{S_SLOT}, 15")
    a.i("v_lshrrev_b32 v2, 6, v0")
    a.i(f"v_and_b32 v{VL16}, 63, v0")
    a.i(f"v_readfirstlane_b32 s{S_W}, v2")
    a.i(f"v_lshlrev_b32 v{VL16}, 4, v{VL16}")
    a.i(f"s_mov_b32 s{S_HI}, 0")
    a.i(f"s_mov_b32 s{S_HI+1}, -1")
    a.i(f"s_and_b32 s{S_WL}, s{S_W}, 3")
    a.i("s_waitcnt lgkmcnt(0)")
    srd(a, SWS, 32, WS_USED + 0x400000)
    stamp(a, 4, SWS, dbg, tmp_v=252)
    a.i(f"s_cmp_ge_u32 s{S_W}, 4")
    a.i("s_cbranch_scc1 L2_ffn")
    attention(a, dbg)
    a.label("L2_ffn")
    ffn(a, dbg)
    a.label("L2_end")
    a.i("s_endpgm")
    footer(a, name, 256)
    return a

if __name__ == "__main__":
    a = k2()
    open("k2.s", "w").write('.amdgcn_target "amdgcn-amd-amdhsa--gfx950"\n' + a.text())
    errs = check(a.lines, "k2")
    print("\n".join(errs[:40])); print(len(errs), "hazard findings")
```

```python
from asmlib import *
NAME = "parallel_sum__mha_block__dense_activation_squared_relu__prompt"
QF  = 0x000000
KF  = 0x200000
VF  = 0x400000
HF  = 0x600000
W2T = 0xD00000
WOT = 0xF00000
OF  = 0x1000000
FF  = 0x1200000
WS_USED = 0x1600000
FLG = 0x1A00000
FQ_OFF, FH_OFF, FO_OFF = 0, 4096, 8192
LSY = 163328
WS_SRD = 0x2000000
S_OUT, S_DBG, S_TAG = 88, 90, 100
DBGT = 0x1800000
ONES = 0x3F803F80
QSCALE = (28 ** -0.5) * 1.4426950408889634
import struct
def f2u(x): return struct.unpack("<I", struct.pack("<f", x))[0]

def srd(a, base, ptr, nbytes, off=None):
    if off is None:
        a.i(f"s_mov_b32 s{base}, s{ptr}")
        a.i(f"s_mov_b32 s{base+1}, s{ptr+1}")
    else:
        a.i(f"s_add_u32 s{base}, s{ptr}, {off}")
        a.i(f"s_addc_u32 s{base+1}, s{ptr+1}, 0")
    a.i(f"s_mov_b32 s{base+2}, {nbytes}")
    a.i(f"s_mov_b32 s{base+3}, 0x20000")

def header(a, name):
    a(f".text")
    a(f".globl {name}")
    a(f".p2align 8")
    a(f".type {name},@function")
    a(f"{name}:")

def footer(a, name, vgprs, sgprs=102):
    a(f'.section .rodata,"a"')
    a(f".p2align 6")
    a(f".amdhsa_kernel {name}")
    a(f"  .amdhsa_next_free_vgpr {vgprs}")
    a(f"  .amdhsa_next_free_sgpr {sgprs}")
    a(f"  .amdhsa_accum_offset {(vgprs+3)//4*4 if vgprs <= 256 else 256}")
    a(f"  .amdhsa_group_segment_fixed_size 0")
    a(f"  .amdhsa_kernarg_size 88")
    a(f"  .amdhsa_user_sgpr_count 2")
    a(f"  .amdhsa_user_sgpr_kernarg_segment_ptr 1")
    a(f"  .amdhsa_system_sgpr_workgroup_id_x 1")
    a(f".end_amdhsa_kernel")

def _stamp_body(a, sws, tmp_s, tmp_v):
    a.i(f"v_mov_b32 v{tmp_v}, s{tmp_s}")
    a.i(f"v_mov_b32 v{tmp_v+1}, s{tmp_s+1}")
    a.i(f"v_mov_b32 v{tmp_v+2}, s{tmp_s+4}")
    a.i(f"v_mov_b32 v{tmp_v+3}, 0")
    a.i(f"buffer_store_dwordx3 v[{tmp_v}:{tmp_v+2}], v{tmp_v+3}, s[{sws}:{sws+3}], s{tmp_s+2} offen")
    a.i("s_nop 1")

def stamp_dyn(a, sidx, base, sws, enable, tmp_s=94, tmp_v=250):
    if not enable: return
    a.i(f"s_memrealtime s[{tmp_s}:{tmp_s+1}]")
    a.i(f"s_memtime s[{tmp_s+4}:{tmp_s+5}]")
    a.i(f"s_waitcnt lgkmcnt(0)")
    a.i(f"s_lshl_b32 s{tmp_s+2}, s2, 9")
    a.i(f"s_lshl_b32 s{tmp_s+3}, s{sidx}, 4")
    a.i(f"s_add_u32 s{tmp_s+2}, s{tmp_s+2}, s{tmp_s+3}")
    a.i(f"s_add_u32 s{tmp_s+2}, s{tmp_s+2}, {DBGT + base*16}")
    _stamp_body(a, sws, tmp_s, tmp_v)

def stamp(a, idx, sws, enable, tmp_s=94, tmp_v=250):
    if not enable: return
    a.i(f"s_memrealtime s[{tmp_s}:{tmp_s+1}]")
    a.i(f"s_memtime s[{tmp_s+4}:{tmp_s+5}]")
    a.i(f"s_waitcnt lgkmcnt(0)")
    a.i(f"s_lshl_b32 s{tmp_s+2}, s2, 9")
    a.i(f"s_add_u32 s{tmp_s+2}, s{tmp_s+2}, {DBGT + idx*16}")
    _stamp_body(a, sws, tmp_s, tmp_v)


import os
POLL_SLEEP = int(os.environ.get('POLL_SLEEP', '4'))
SPIN_MAX = 1 << 18
_uid = [0]
def poll_flags(a, vaddr, vtmp, sws, stmp, nlanes_mask_lo=None):
    _uid[0] += 1; u = _uid[0]
    a.i(f"s_mov_b32 s{stmp}, {SPIN_MAX}")
    a.i(f"s_mov_b32 s{stmp+1}, {FLG}")
    a.label(f"LP{u}")
    a.i(f"buffer_load_dword v{vtmp}, v{vaddr}, s[{sws}:{sws+3}], s{stmp+1} offen sc1")
    a.i("s_waitcnt vmcnt(0)")
    a.i(f"v_cmp_ne_u32 vcc, s{S_TAG}, v{vtmp}")
    a.i(f"s_cbranch_vccz LP{u}x")
    a.i(f"s_sleep {POLL_SLEEP}")
    a.i(f"s_sub_u32 s{stmp}, s{stmp}, 1")
    a.i(f"s_cmp_lg_u32 s{stmp}, 0")
    a.i(f"s_cbranch_scc1 LP{u}")
    a.label(f"LP{u}x")

def set_flag(a, soff_reg, vtmp, sws):
    a.i(f"v_mov_b32 v{vtmp}, s{S_TAG}")
    a.i(f"v_mov_b32 v{vtmp+1}, 0")
    a.i(f"s_mov_b64 exec, 1")
    a.i(f"buffer_store_dword v{vtmp}, v{vtmp+1}, s[{sws}:{sws+3}], s{soff_reg} offen sc1")
    a.i(f"s_mov_b64 exec, -1")

def get_tag(a, vtmp, stmp, issued=False):
    _uid[0] += 1; u = _uid[0]
    a.i(f"s_mov_b32 s{stmp}, s{S_DBG}")
    a.i(f"s_mov_b32 s{stmp+1}, s{S_DBG+1}")
    a.i(f"s_mov_b32 s{stmp+2}, 256")
    a.i(f"s_mov_b32 s{stmp+3}, 0x20000")
    a.i(f"s_mov_b32 s{stmp+4}, {SPIN_MAX}")
    a.i(f"v_mov_b32 v{vtmp+1}, 0")
    a.label(f"LT{u}")
    a.i(f"buffer_load_dword v{vtmp}, v{vtmp+1}, s[{stmp}:{stmp+3}], 0 offen sc1")
    a.i("s_waitcnt vmcnt(0)")
    a.i(f"v_readfirstlane_b32 s{S_TAG}, v{vtmp}")
    a.i("s_nop 3")
    a.i(f"s_cmp_lg_u32 s{S_TAG}, 0")
    a.i(f"s_cbranch_scc1 LT{u}x")
    a.i("s_sleep 2")
    a.i(f"s_sub_u32 s{stmp+4}, s{stmp+4}, 1")
    a.i(f"s_cmp_lg_u32 s{stmp+4}, 0")
    a.i(f"s_cbranch_scc1 LT{u}")
    a.label(f"LT{u}x")


def lds_signal(a, off, vtmp):
    a.i(f"v_mov_b32 v{vtmp}, {LSY + off}")
    a.i(f"v_mov_b32 v{vtmp+1}, s{S_TAG}")
    a.i(f"ds_write_b32 v{vtmp}, v{vtmp+1}")

def lds_wait(a, off, vtmp, stmp):
    _uid[0] += 1; u = _uid[0]
    a.i(f"v_mov_b32 v{vtmp}, {LSY + off}")
    a.i(f"s_mov_b32 s{stmp}, {SPIN_MAX*4}")
    a.label(f"LW{u}")
    a.i(f"ds_read_b32 v{vtmp+1}, v{vtmp}")
    a.i("s_waitcnt lgkmcnt(0)")
    a.i(f"v_cmp_ne_u32 vcc, s{S_TAG}, v{vtmp+1}")
    a.i(f"s_cbranch_vccz LW{u}x")
    a.i("s_sleep 1")
    a.i(f"s_sub_u32 s{stmp}, s{stmp}, 1")
    a.i(f"s_cmp_lg_u32 s{stmp}, 0")
    a.i(f"s_cbranch_scc1 LW{u}")
    a.label(f"LW{u}x")

def last_arriver_flag(a, off, n, soff_reg, vtmp, sws, stmp):
    _uid[0] += 1; u = _uid[0]
    a.i(f"v_mov_b32 v{vtmp}, {LSY + off}")
    a.i(f"v_mov_b32 v{vtmp+1}, 1")
    a.i("s_mov_b64 exec, 1")
    a.i(f"ds_add_rtn_u32 v{vtmp+1}, v{vtmp}, v{vtmp+1}")
    a.i("s_waitcnt lgkmcnt(0)")
    a.i("s_mov_b64 exec, -1")
    a.i(f"v_readfirstlane_b32 s{stmp}, v{vtmp+1}")
    a.i("s_nop 3")
    a.i(f"s_cmp_lg_u32 s{stmp}, {n-1}")
    a.i(f"s_cbranch_scc1 LA{u}x")
    set_flag(a, soff_reg, vtmp, sws)
    a.label(f"LA{u}x")
```

```python
from common import *
import os

XS   = 16384
WB   = 114688
LDS1 = 163840
XRDY = 32
STA  = 48
STC  = 64
XA   = 80
STT  = 96
XIS  = 112
STATS = 147456 + 12288
STG  = WB + 4*8192

ACC = 16
WF  = [80, 84, 88, 92]
XF  = [96, 112, 128, 144]
PK  = 128
TA  = 160
XAD = 161
VW  = 165
VLANE16 = 250
VFL = 168
VU  = 176
VB  = 192
VBR = 208
CR  = 216
HX  = [16, 20, 24, 28]
HN  = [32, 36]
HSB = [40, 56]
VOX = 72
HAD = 76
HAD2 = 80
VSUM, VSQ = 84, 85
VR, VNM = 86, 87
VPQ, VPF = 88, 89
VDUM = 8

S_RT, S_CG, S_KIND, S_W = 34, 35, 36, 37
SX, SWC, SWS, SM = 40, 44, 48, 52
S_SOX, S_SO, S_M0, S_C, S_FT0, S_NF, S_RS16 = 56, 57, 58, 59, 60, 61, 62
S_TILE, S_RND, S_SH, S_TADJ, S_XD = 63, 64, 65, 66, 67
S_KIND0, S_TILE0 = 68, 69
S_ONES = 73
S_TMP = 76
S_ROLE = 87
S_MASK = 92
DBG = [False]
FUSED = [False]
KNAME = NAME + '_kernel'

def mf(acc, A, B, C=None):
    c = acc if C is None else C
    return f"v_mfma_f32_32x32x16_bf16 v[{acc}:{acc+15}], v[{A}:{A+3}], v[{B}:{B+3}], v[{c}:{c+15}]"

def norm(src, dst):
    N = []
    for d in range(4):
        N.append(f"v_lshlrev_b32 v{VU+2*d}, 16, v{src+d}")
        N.append(f"v_and_b32 v{VU+2*d+1}, s{S_MASK}, v{src+d}")
    for d in range(8):
        N.append(f"v_fma_f32 v{VU+d}, v{VU+d}, v{VR}, v{VNM}")
    for d in range(4):
        N.append(f"v_cvt_pk_bf16_f32 v{dst+d}, v{VU+2*d}, v{VU+2*d+1}")
    return N

def xaddr_setup(a, dst, t, rowtile_sreg=None):
    a.i(f"v_lshrrev_b32 v{t+1}, 5, v{t}")
    a.i(f"v_and_b32 v{t+2}, 31, v{t}")
    a.i(f"v_bfe_u32 v{t+3}, v{t+2}, 1, 3")
    a.i(f"v_lshlrev_b32 v{t+4}, 7, v{t+2}")
    if rowtile_sreg is not None:
        a.i(f"s_lshl_b32 s12, s{rowtile_sreg}, 12")
        a.i(f"v_add_u32 v{t+4}, s12, v{t+4}")
    for k in range(4):
        a.i(f"v_add_u32 v{t+5}, {2*k}, v{t+1}")
        a.i(f"v_xor_b32 v{t+5}, v{t+5}, v{t+3}")
        a.i(f"v_lshlrev_b32 v{t+5}, 4, v{t+5}")
        a.i(f"v_add_u32 v{dst+k}, v{t+4}, v{t+5}")

_rp = [0]
def dma_params(a, rnd):
    t = VU
    _rp[0] += 1; u = _rp[0]
    if rnd == 0:
        a.i(f"s_cmp_eq_u32 s{S_W}, 3")
        a.i(f"s_cbranch_scc1 L1_p{u}_f")
        a.i(f"s_mul_i32 s{S_TILE}, s{S_CG}, 3")
        a.i(f"s_add_u32 s{S_TILE}, s{S_TILE}, s{S_W}")
        a.i(f"s_cmp_ge_u32 s{S_TILE}, 32")
        a.i(f"s_cselect_b32 s{S_KIND}, 2, 1")
        srd(a, SWC, 18, 448*2688)
        a.i(f"s_mul_i32 s12, s{S_TILE}, 56")
        a.i(f"s_and_b32 s{S_SH}, s12, 15")
        a.i(f"s_sub_u32 s{S_SO}, s12, s{S_SH}")
        a.i(f"s_movk_i32 s13, 2688")
        a.i(f"s_branch L1_p{u}_go")
        a.label(f"L1_p{u}_f")
        a.i(f"s_mov_b32 s{S_TILE}, s{S_FT0}")
        a.i(f"s_mov_b32 s{S_SH}, 0")
    else:
        a.i(f"s_add_u32 s{S_TILE}, s{S_FT0}, s{S_W}")
        a.i(f"s_add_u32 s{S_TILE}, s{S_TILE}, 1")
    a.i(f"s_mov_b32 s{S_KIND}, 0")
    srd(a, SWC, 24, 448*3584)
    a.i(f"s_lshl_b32 s{S_SO}, s{S_TILE}, 6")
    a.i(f"s_movk_i32 s13, 3584")
    if rnd == 1:
        a.i(f"s_add_u32 s12, s{S_W}, 1")
        a.i(f"s_cmp_ge_u32 s12, s{S_NF}")
        a.i(f"s_cselect_b32 s{S_KIND}, 3, s{S_KIND}")
        a.i(f"s_cselect_b32 s{SWC+2}, 0, s{SWC+2}")
    a.label(f"L1_p{u}_go")
    a.i(f"s_lshl_b32 s{S_RS16}, s13, 4")
    a.i(f"v_lshrrev_b32 v{t}, 6, v{VLANE16}")
    a.i(f"v_mul_lo_u32 v{t}, v{t}, s13")
    a.i(f"v_and_b32 v{t+1}, 48, v{VLANE16}")
    a.i(f"v_add_u32 v{VW}, v{t}, v{t+1}")

def wdma(slot_imm):
    return [f"s_add_u32 m0, s{S_M0}, {slot_imm}",
            f"s_nop 0",
            f"buffer_load_dwordx4 v{VW}, s[{SWC}:{SWC+3}], s{S_SO} offen lds",
            f"s_add_u32 s{S_SO}, s{S_SO}, s{S_RS16}"]

def xspin(a, tag):
    a.i(f"s_mov_b32 s{S_TMP+2}, {SPIN_MAX*4}")
    a.label(f"L1_{tag}_xsp")
    a.i(f"ds_read_b128 v[{VFL}:{VFL+3}], v{VFL+4}")
    a.i("s_waitcnt lgkmcnt(0)")
    a.i(f"v_min_u32 v{VFL}, v{VFL}, v{VFL+1}")
    a.i(f"v_min3_u32 v{VFL}, v{VFL}, v{VFL+2}, v{VFL+3}")
    a.i("s_nop 0")
    a.i(f"v_readfirstlane_b32 s{S_TMP}, v{VFL}")
    a.i("s_nop 3")
    a.i(f"s_cmp_ge_u32 s{S_TMP}, s{S_TMP+1}")
    a.i(f"s_cbranch_scc1 L1_{tag}_xok")
    a.i(f"s_sub_u32 s{S_TMP+2}, s{S_TMP+2}, 1")
    a.i(f"s_cmp_lg_u32 s{S_TMP+2}, 0")
    a.i(f"s_cbranch_scc1 L1_{tag}_xsp")
    a.label(f"L1_{tag}_xok")

def step(a, tag, k, transposed, check, cinit=None):
    M = [(mf(ACC+16*i, WF[k], XF[k]+4*i, cinit) if transposed else mf(ACC+16*i, XF[k]+4*i, WF[k], cinit)) for i in range(4)]
    k2 = (k + 2) & 3
    lg = 7 if (k == 1 and check) else 6
    a.i(f"s_waitcnt vmcnt(5) lgkmcnt({lg})")
    if k == 0 and check:
        a.i(f"ds_read_b128 v[{VFL}:{VFL+3}], v{VFL+4}")
    slot = k2 * 1024
    Rw = [f"ds_read_b64_tr_b16 v[{WF[k2]}:{WF[k2]+1}], v{TA} offset:{slot}",
          f"ds_read_b64_tr_b16 v[{WF[k2]+2}:{WF[k2]+3}], v{TA} offset:{slot+256}"]
    Rx = [f"ds_read_b128 v[{XF[k2]+4*i}:{XF[k2]+4*i+3}], v{XAD+k2} offset:{4096*i}" for i in range(4)]
    D = wdma(k*1024)
    seq = [[Rw[0], Rx[0]], [Rw[1], Rx[1]], [Rx[2]] + D[:2], [Rx[3]] + D[2:]]
    if k == 1:
        seq[3] += [f"v_xor_b32 v{TA}, 4096, v{TA}", f"v_subrev_u32 v{TA}, s{S_TADJ}, v{TA}"]
        seq[3] += [f"v_add_u32 v{XAD+kk}, s{S_XD}, v{XAD+kk}" for kk in (0, 1)]
    if k == 2:
        seq[3] += [f"v_add_u32 v{XAD+kk}, s{S_XD}, v{XAD+kk}" for kk in (2, 3)]
    if k == 3:
        seq[1] += [f"s_xor_b32 s{S_M0+0}, s{S_M0}, 4096"] if False else []
    a.i(M[0])
    if k == 2 and check:
        a.i(f"v_min_u32 v{VFL}, v{VFL}, v{VFL+1}")
        a.i(f"v_min3_u32 v{VFL}, v{VFL}, v{VFL+2}, v{VFL+3}")
        a.i(f"s_add_u32 s{S_TMP+1}, s{S_C}, 2")
        a.i(f"v_readfirstlane_b32 s{S_TMP}, v{VFL}")
        a.i(f"s_min_u32 s{S_TMP+1}, s{S_TMP+1}, 7")
        a.i(f"s_cmp_eq_u32 s{S_C}, 0")
        a.i(f"s_cselect_b32 s{S_TMP+1}, 0, s{S_TMP+1}")
        a.i(f"s_cmp_ge_u32 s{S_TMP}, s{S_TMP+1}")
        a.i(f"s_cbranch_scc1 L1_{tag}_xok")
        xspin(a, tag)
    for x in seq[0]: a.i(x)
    for i in range(1, 4):
        a.i(M[i])
        for x in seq[i]: a.i(x)

def chunk_end(a, tag, rnd):
    if os.environ.get('K1_FINE'): stamp_dyn(a, S_C, 16 if rnd == 0 else 24, SWS, DBG[0], tmp_v=12)
    a.i(f"s_xor_b32 s{S_M0}, s{S_M0}, 4096")
    a.i(f"s_add_u32 s{S_C}, s{S_C}, 1")
    if rnd == 1:
        a.i(f"s_cmp_ge_u32 s{S_C}, 5")
        a.i(f"s_cselect_b32 s{SWC+2}, 0, s{SWC+2}")
        return
    a.i(f"s_mov_b32 s{S_TADJ}, 0")
    a.i(f"s_mov_b32 s{S_XD}, {XS}")
    a.i(f"s_cmp_lt_u32 s{S_C}, 5")
    a.i(f"s_cbranch_scc1 L1_{tag}_ce")
    a.i(f"s_cmp_eq_u32 s{S_C}, 5")
    a.i(f"s_cbranch_scc0 L1_{tag}_c6")
    a.i(f"s_mov_b32 s{S_TMP+4}, s{S_SH}")
    dma_params(a, 1)
    a.i(f"s_mov_b32 s{S_SH}, s{S_TMP+4}")
    a.i(f"s_branch L1_{tag}_ce")
    a.label(f"L1_{tag}_c6")
    a.i(f"s_cmp_eq_u32 s{S_C}, 6")
    a.i(f"s_cbranch_scc0 L1_{tag}_ce")
    a.i(f"s_mov_b32 s{S_TADJ}, s{S_SH}")
    a.i(f"s_mov_b32 s{S_XD}, {(-6*XS) & 0xffffffff}")
    a.label(f"L1_{tag}_ce")

def gemm_loop(a, tag, transposed, rnd=0):
    a.label(f"L1_{tag}_loop")
    for k in range(4): step(a, tag, k, transposed, rnd == 0)
    chunk_end(a, tag, rnd)
    a.i(f"s_cmp_lt_u32 s{S_C}, 7")
    a.i(f"s_cbranch_scc1 L1_{tag}_loop")

def lds_flag(a, word_off_sreg_base, val, t):
    a.i(f"s_lshl_b32 s12, s{S_W}, 2")
    a.i(f"s_add_u32 s12, s12, {LSY + word_off_sreg_base}")
    a.i(f"v_mov_b32 v{t}, s12")
    a.i(f"v_mov_b32 v{t+1}, {val}")
    a.i(f"ds_write_b32 v{t}, v{t+1}")

_sp = [0]
def lds_spin(a, base, val, t):
    _sp[0] += 1; u = _sp[0]
    a.i(f"s_lshl_b32 s12, s{S_W}, 2")
    a.i(f"s_add_u32 s12, s12, {LSY + base}")
    a.i(f"v_mov_b32 v{t}, s12")
    a.i(f"s_mov_b32 s13, {SPIN_MAX*4}")
    a.label(f"L1_ls{u}")
    a.i(f"ds_read_b32 v{t+1}, v{t}")
    a.i("s_waitcnt lgkmcnt(0)")
    a.i(f"v_readfirstlane_b32 s12, v{t+1}")
    a.i("s_nop 3")
    a.i(f"s_cmp_ge_u32 s12, {val}")
    a.i(f"s_cbranch_scc1 L1_ls{u}x")
    a.i("s_sleep 1")
    a.i(f"s_sub_u32 s13, s13, 1")
    a.i(f"s_cmp_lg_u32 s13, 0")
    a.i(f"s_cbranch_scc1 L1_ls{u}")
    a.label(f"L1_ls{u}x")

def stage_pair(a, i0_, vaddr):
    for i in (i0_, i0_+1):
        pk = PK + 8*i
        a.i(f"ds_write_b128 v{vaddr}, v[{pk}:{pk+3}] offset:{(i & 1)*2048}")
        a.i(f"ds_write_b128 v{vaddr}, v[{pk+4}:{pk+7}] offset:{(i & 1)*2048 + 1024}")

def epi_qkv(a, isv):
    t = VU
    u = "v" if isv else "q"
    a.i(f"s_lshl_b32 s12, s{S_W}, 12")
    a.i(f"s_add_u32 s12, s12, {STG}")
    a.i(f"v_add_u32 v{t+6}, s12, v{VLANE16}")
    if not isv:
        a.i(f"s_mov_b32 s{S_TMP+9}, {f2u(QSCALE):#x}")
        a.i(f"s_cmp_ge_u32 s{S_TILE0}, 16")
        a.i(f"s_cselect_b32 s{S_TMP+5}, 1.0, s{S_TMP+9}")
        a.i(f"s_cselect_b32 s{S_TMP+8}, {ONES:#x}, 0")
        a.i(f"s_mov_b32 s{S_TMP+6}, 0")
        a.i(f"s_mov_b32 s{S_TMP+7}, -1")
        a.i(f"v_mov_b32 v{t}, s{S_TMP+5}")
        a.i(f"v_mov_b32 v{t+2}, s{S_TMP+8}")
        a.i(f"v_lshrrev_b32 v{t+3}, 16, v{t+2}")
        a.i("s_nop 4")
    else:
        a.i(f"v_and_b32 v{t}, 31, v0")
        a.i(f"v_cmp_le_u32 s[{S_TMP+6}:{S_TMP+7}], 28, v{t}")
        a.i(f"v_cmp_eq_u32 vcc, 28, v{t}")
        a.i(f"v_mov_b32 v{t+1}, 0")
        a.i(f"v_mov_b32 v{t+2}, {ONES:#x}")
        a.i(f"v_cndmask_b32 v{t+1}, v{t+1}, v{t+2}, vcc")
        a.i("s_nop 7")
    for i in range(4):
        acc = ACC + 16*i; pk = PK + 8*i
        if not isv:
            for p in range(8):
                a.i(f"v_pk_mul_f32 v[{acc+2*p}:{acc+2*p+1}], v[{acc+2*p}:{acc+2*p+1}], v[{t}:{t+1}] op_sel_hi:[1,0]")
            for p in range(8):
                a.i(f"v_cvt_pk_bf16_f32 v{pk+p}, v{acc+2*p}, v{acc+2*p+1}")
            a.i(f"v_cndmask_b32 v{pk+6}, v{pk+6}, v{t+2}, s[{S_TMP+6}:{S_TMP+7}]")
            a.i(f"v_cndmask_b32 v{pk+7}, v{pk+7}, v{t+3}, s[{S_TMP+6}:{S_TMP+7}]")
        else:
            for p in range(8):
                a.i(f"v_cvt_pk_bf16_f32 v{pk+p}, v{acc+2*p}, v{acc+2*p+1}")
            for p in range(8):
                a.i(f"v_cndmask_b32 v{pk+p}, v{pk+p}, v{t+1}, s[{S_TMP+6}:{S_TMP+7}]")
        if i == 1:
            stage_pair(a, 0, t+6)
        if i == 2:
            a.i("s_waitcnt lgkmcnt(0)")
            lds_flag(a, STA, 1, t+8)
    lds_spin(a, STC, 1, t+8)
    stage_pair(a, 2, t+6)
    a.i("s_waitcnt lgkmcnt(0)")
    lds_flag(a, STA, 2, t+8)

def epi_f(a):
    t = VU
    a.i(f"s_lshl_b32 s12, s{S_W}, 13")
    a.i(f"s_add_u32 s12, s12, {WB}")
    a.i(f"v_add_u32 v{t+6}, s12, v{VLANE16}")
    a.i("s_waitcnt vmcnt(0) lgkmcnt(0)")
    a.i("s_nop 7")
    for i in range(4):
        acc = ACC + 16*i; pk = PK + 8*i
        for r in range(16): a.i(f"v_max_f32 v{acc+r}, 0, v{acc+r}")
        for p in range(8):
            a.i(f"v_pk_mul_f32 v[{acc+2*p}:{acc+2*p+1}], v[{acc+2*p}:{acc+2*p+1}], v[{acc+2*p}:{acc+2*p+1}]")
        for p in range(8):
            a.i(f"v_cvt_pk_bf16_f32 v{pk+p}, v{acc+2*p}, v{acc+2*p+1}")
        a.i(f"ds_write_b128 v{t+6}, v[{pk}:{pk+3}] offset:{i*2048}")
        a.i(f"ds_write_b128 v{t+6}, v[{pk+4}:{pk+7}] offset:{i*2048+1024}")
    a.i("s_waitcnt vmcnt(0) lgkmcnt(0)")
    lds_flag(a, STA, 3, t+8)

def bias_load(a):
    t = VU
    srd(a, SM, 26, 3584)
    a.i(f"s_lshl_b32 s12, s{S_TMP+5}, 6")
    a.i(f"v_bfe_u32 v{t}, v0, 5, 1")
    a.i(f"v_lshlrev_b32 v{t}, 3, v{t}")
    for g in range(4):
        a.i(f"buffer_load_dwordx2 v[{VBR+2*g}:{VBR+2*g+1}], v{t}, s[{SM}:{SM+3}], s12 offen offset:{16*g}")

def bias_unpack(a):
    for k in range(8):
        a.i(f"v_lshlrev_b32 v{VB+2*k}, 16, v{VBR+k}")
        a.i(f"v_and_b32 v{VB+2*k+1}, s{S_MASK}, v{VBR+k}")

def qkv_flag(a):
    a.i(f"s_lshl_b32 s13, s{S_CG}, 8")
    a.i(f"s_lshl_b32 s14, s{S_RT}, 2")
    a.i(f"s_add_u32 s13, s13, s14")
    a.i(f"s_add_u32 s13, s13, {FLG + FQ_OFF}")
    last_arriver_flag(a, 0, 3, 13, 2, SWS, 12)

def compute(a, dbg):
    t = VU
    if FUSED[0] and not os.environ.get('NO_CODEPF'):
        a.i(f"s_cmp_lg_u32 s{S_W}, 3")
        a.i("s_cbranch_scc1 L1_nopf")
        a.i("s_lshr_b32 s6, s2, 3")
        a.i(f"s_cmp_ge_u32 s6, (L_CODE_END - {KNAME}) / 1024")
        a.i("s_cbranch_scc1 L1_nopf")
        a.i("s_getpc_b64 s[4:5]")
        a.label("L1_pc")
        a.i(f"s_sub_u32 s4, s4, L1_pc - {KNAME}")
        a.i("s_subb_u32 s5, s5, 0")
        a.i("s_lshl_b32 s6, s6, 10")
        a.i("s_add_u32 s4, s4, s6")
        a.i("s_addc_u32 s5, s5, 0")
        a.i(f"global_load_dwordx4 v[{VDUM}:{VDUM+3}], v{VLANE16}, s[4:5]")
        a.label("L1_nopf")
    a.i(f"v_and_b32 v{t+8}, 63, v0")
    dma_params(a, 0)
    a.i(f"s_mov_b32 s{S_KIND0}, s{S_KIND}")
    a.i(f"s_mov_b32 s{S_TILE0}, s{S_TILE}")
    a.i(f"s_lshl_b32 s{S_M0}, s{S_W}, 13")
    a.i(f"s_add_u32 s{S_M0}, s{S_M0}, {WB}")
    a.i(f"s_add_u32 s{S_TMP+5}, s{S_FT0}, s{S_W}")
    a.i(f"s_add_u32 s{S_TMP+5}, s{S_TMP+5}, 1")
    a.i(f"s_cmp_eq_u32 s{S_W}, 3")
    a.i(f"s_cselect_b32 s{S_TMP+5}, s{S_FT0}, s{S_TMP+5}")
    NW0 = int(os.environ.get('K1_NW0', '3'))
    bias_load(a)
    for s_ in range(NW0):
        for x in wdma(1024*s_): a.i(x)
    lds_spin(a, XIS, 1, t+10)
    for s_ in range(NW0, 8):
        for x in wdma(1024*s_): a.i(x)
    l = t+8
    a.i(f"v_lshrrev_b32 v{t+1}, 5, v{l}")
    a.i(f"v_lshlrev_b32 v{t+1}, 3, v{t+1}")
    a.i(f"v_bfe_u32 v{t+2}, v{l}, 2, 2")
    a.i(f"v_add_u32 v{t+1}, v{t+1}, v{t+2}")
    a.i(f"v_lshlrev_b32 v{t+1}, 6, v{t+1}")
    a.i(f"v_bfe_u32 v{t+2}, v{l}, 4, 1")
    a.i(f"v_lshlrev_b32 v{t+2}, 5, v{t+2}")
    a.i(f"v_add_u32 v{t+1}, v{t+1}, v{t+2}")
    a.i(f"v_and_b32 v{t+2}, 3, v{l}")
    a.i(f"v_lshlrev_b32 v{t+2}, 3, v{t+2}")
    a.i(f"v_add_u32 v{t+1}, v{t+1}, v{t+2}")
    a.i(f"s_add_u32 s12, s{S_M0}, s{S_SH}")
    a.i(f"v_add_u32 v{TA}, s12, v{t+1}")
    xaddr_setup(a, XAD, l)
    a.i(f"v_mov_b32 v{VFL+4}, {LSY + XRDY}")
    a.i(f"s_mov_b32 s{S_C}, 0")
    a.i(f"s_mov_b32 s{S_RND}, 0")
    a.i(f"s_mov_b32 s{S_TADJ}, 0")
    a.i(f"s_mov_b32 s{S_XD}, {XS}")
    for r in range(64): a.i(f"v_mov_b32 v{ACC+r}, 0")
    lds_spin(a, STT, 1, t+10)
    a.i(f"s_lshl_b32 s12, s{S_W}, 9")
    a.i(f"s_add_u32 s12, s12, {STATS}")
    a.i(f"v_lshrrev_b32 v{t+10}, 1, v{VLANE16}")
    a.i(f"v_add_u32 v{t+10}, s12, v{t+10}")
    a.i(f"ds_read_b64 v[{CR}:{CR+1}], v{t+10}")
    a.i(f"s_lshl_b32 s12, s{S_W}, 12")
    for k in range(4): a.i(f"v_add_u32 v{t+12+k}, s12, v{XAD+k}")
    for c in range(2):
        for k in range(4):
            a.i(f"ds_read_b128 v[{XF[c]+4*k}:{XF[c]+4*k+3}], v{t+12+k} offset:{c*XS}")
    a.i("s_waitcnt lgkmcnt(4)")
    gv = (VR, VNM)
    globals()['VR'], globals()['VNM'] = CR, CR+1
    for c in range(2):
        if c == 1: a.i("s_waitcnt lgkmcnt(4)")
        for k in range(4):
            for x in norm(XF[c]+4*k, XF[2]+4*(k & 1)): a.i(x)
            a.i(f"ds_write_b128 v{t+12+k}, v[{XF[2]+4*(k & 1)}:{XF[2]+4*(k & 1)+3}] offset:{c*XS}")
    globals()['VR'], globals()['VNM'] = gv
    a.i("s_waitcnt lgkmcnt(0)")
    lds_flag(a, XA, 2, t+10)
    a.i(f"v_mov_b32 v{t+10}, {LSY + XA}")
    a.i(f"s_mov_b32 s{S_TMP+2}, {SPIN_MAX*4}")
    a.label("L1_x0")
    a.i(f"ds_read_b128 v[{VFL}:{VFL+3}], v{t+10}")
    a.i("s_waitcnt lgkmcnt(0)")
    a.i(f"v_min_u32 v{VFL}, v{VFL}, v{VFL+1}")
    a.i(f"v_min3_u32 v{VFL}, v{VFL}, v{VFL+2}, v{VFL+3}")
    a.i("s_nop 0")
    a.i(f"v_readfirstlane_b32 s{S_TMP}, v{VFL}")
    a.i("s_nop 3")
    a.i(f"s_cmp_ge_u32 s{S_TMP}, 2")
    a.i("s_cbranch_scc1 L1_x0x")
    a.i(f"s_sub_u32 s{S_TMP+2}, s{S_TMP+2}, 1")
    a.i(f"s_cmp_lg_u32 s{S_TMP+2}, 0")
    a.i("s_cbranch_scc1 L1_x0")
    a.label("L1_x0x")
    a.i("s_waitcnt vmcnt(6)")
    bias_unpack(a)
    a.i(f"s_cmp_eq_u32 s{S_W}, 3")
    a.i("s_cbranch_scc0 L1_init_d")
    for r in range(64): a.i(f"v_mov_b32 v{ACC+r}, v{VB+(r & 15)}")
    a.label("L1_init_d")
    stamp(a, 13, SWS, dbg, tmp_v=12)
    for k in range(2):
        for i in range(4): a.i(f"ds_read_b128 v[{XF[k]+4*i}:{XF[k]+4*i+3}], v{XAD+k} offset:{4096*i}")
        a.i(f"ds_read_b64_tr_b16 v[{WF[k]}:{WF[k]+1}], v{TA} offset:{1024*k}")
        a.i(f"ds_read_b64_tr_b16 v[{WF[k]+2}:{WF[k]+3}], v{TA} offset:{1024*k+256}")
    a.i("s_waitcnt lgkmcnt(0)")
    a.i(f"s_cmp_eq_u32 s{S_KIND0}, 2")
    a.i("s_cbranch_scc1 L1_goN")
    gemm_loop(a, "T0", True)
    stamp(a, 2, SWS, dbg, tmp_v=12)
    a.i(f"s_cmp_eq_u32 s{S_KIND0}, 0")
    a.i("s_cbranch_scc1 L1_epiF")
    epi_qkv(a, False)
    a.i("s_branch L1_r1")
    a.label("L1_goN")
    gemm_loop(a, "N0", False)
    stamp(a, 2, SWS, dbg, tmp_v=12)
    epi_qkv(a, True)
    a.label("L1_r1")
    a.i(f"s_cmp_eq_u32 s{S_KIND}, 3")
    a.i("s_cbranch_scc1 L1_idle")
    a.i(f"s_mov_b32 s{S_TILE0}, s{S_TILE}")
    a.i(f"s_mov_b32 s{S_C}, 0")
    a.i(f"s_mov_b32 s{S_TADJ}, 0")
    a.i(f"s_mov_b32 s{S_XD}, {XS}")
    for k in range(4): step(a, "P0", k, True, False, cinit=(VB if k == 0 else None))
    chunk_end(a, "P0", 1)
    gemm_loop(a, "T1", True, 1)
    stamp(a, 15, SWS, dbg, tmp_v=12)
    a.label("L1_epiF")
    epi_f(a)
    a.i("s_branch L1_done")
    a.label("L1_idle")
    a.i("s_waitcnt vmcnt(0) lgkmcnt(0)")
    lds_flag(a, STA, 4, VU+8)
    a.label("L1_done")
    a.i("s_waitcnt lgkmcnt(0)")
    a.i("s_barrier")
    stamp(a, 3, SWS, dbg, tmp_v=12)
    if FUSED[0]: a.i("s_branch L2_attn_entry")
    else: a.i("s_endpgm")

def helper(a, dbg):
    global VU
    t = 96
    save = VU
    VU = 112
    a.i(f"v_and_b32 v{t}, 63, v0")
    a.i(f"s_lshr_b32 s12, s2, 5")
    a.i(f"s_lshl_b32 s12, s12, 4")
    a.i(f"s_lshl_b32 s13, s{S_W}, 2")
    a.i(f"s_add_u32 s12, s12, s13")
    a.i(f"s_lshl_b32 s13, s{S_RT}, 7")
    a.i(f"s_add_u32 s12, s12, s13")
    a.i(f"s_mul_i32 s12, s12, 896")
    for i in range(4):
        a.i(f"buffer_load_dwordx4 v[{VDUM}:{VDUM+3}], v{VLANE16}, s[{SX}:{SX+3}], s12 offen offset:{min(1024*i, 2560)}")
    a.i(f"v_lshrrev_b32 v{t+1}, 3, v{t}")
    a.i(f"v_lshrrev_b32 v{t+2}, 4, v{t}")
    a.i(f"v_and_b32 v{t+3}, 7, v{t}")
    a.i(f"v_mul_u32_u24 v{t+5}, 896, v{t+1}")
    for i in range(4):
        a.i(f"v_xor_b32 v{t+4}, v{t+3}, v{t+2}")
        if i & 1: a.i(f"v_xor_b32 v{t+4}, 4, v{t+4}")
        a.i(f"v_lshlrev_b32 v{t+4}, 4, v{t+4}")
        a.i(f"v_add_u32 v{t+4}, v{t+4}, v{t+5}")
        a.i(f"v_add_u32 v{VOX+i}, {8*i*896 - 1024*i}, v{t+4}")
    a.i(f"s_lshl_b32 s12, s{S_RT}, 7")
    a.i(f"s_lshl_b32 s13, s{S_W}, 5")
    a.i(f"s_add_u32 s12, s12, s13")
    a.i(f"s_mul_i32 s{S_SOX}, s12, 896")
    vm = ["xs"]*4
    def xdma(c):
        a.i(f"s_add_u32 m0, s13, {c*XS}")
        if c: a.i(f"s_add_u32 s{S_SOX}, s{S_SOX}, 128")
        else: a.i("s_nop 0")
        for i in range(4):
            a.i(f"buffer_load_dwordx4 v{VOX+i}, s[{SX}:{SX+3}], s{S_SOX} offen offset:{1024*i} lds")
            vm.append(f"x{c}")
    def wait_for(name):
        last = max(k for k, n in enumerate(vm) if n == name)
        a.i(f"s_waitcnt vmcnt({len(vm) - 1 - last})")
    a.i(f"s_lshl_b32 s13, s{S_W}, 12")
    for c in range(4): xdma(c)
    xaddr_setup(a, HAD, t, S_W)
    a.i(f"s_lshl_b32 s13, s{S_W}, 12")
    for k in range(4): a.i(f"v_add_u32 v{HAD2+k}, 65536, v{HAD+k}")
    a.i(f"v_mov_b32 v{VSUM}, 0")
    a.i(f"v_mov_b32 v{VSQ}, 0")
    a.i(f"v_lshrrev_b32 v{t+1}, 5, v{t}")
    a.i(f"v_lshlrev_b32 v{t+1}, 5, v{t+1}")
    a.i(f"v_bfe_u32 v{t+2}, v{t}, 4, 1")
    a.i(f"v_add_u32 v{t+1}, v{t+1}, v{t+2}")
    a.i(f"v_and_b32 v{t+2}, 15, v{t}")
    a.i(f"v_lshlrev_b32 v{t+2}, 4, v{t+2}")
    a.i(f"v_mul_u32_u24 v{VPQ}, 2688, v{t+1}")
    a.i(f"v_add_u32 v{VPQ}, v{VPQ}, v{t+2}")
    a.i(f"v_mul_u32_u24 v{VPF}, 3584, v{t+1}")
    a.i(f"v_add_u32 v{VPF}, v{VPF}, v{t+2}")
    srd(a, SWC, 18, 448*2688)
    srd(a, SM, 24, 448*3584)
    a.i(f"s_and_b32 s12, s{S_RT}, 3")
    a.i(f"s_lshl_b32 s12, s12, 2")
    a.i(f"s_add_u32 s12, s12, s{S_W}")
    a.i(f"s_lshl_b32 s12, s12, 1")
    a.i(f"s_add_u32 s14, s12, 128")
    a.i(f"s_mul_i32 s{S_TMP}, s14, 2688")
    a.i(f"s_mul_i32 s14, s{S_CG}, 168")
    a.i(f"s_and_b32 s14, s14, -16")
    a.i(f"s_add_u32 s{S_TMP}, s{S_TMP}, s14")
    a.i(f"s_mul_i32 s{S_TMP+1}, s12, 3584")
    a.i(f"s_lshl_b32 s14, s{S_FT0}, 6")
    a.i(f"s_add_u32 s{S_TMP+1}, s{S_TMP+1}, s14")
    RAW = 128
    def rd(c):
        b = RAW + 16*c; lo = c*XS
        for k in range(4):
            if lo < 65536: a.i(f"ds_read_b128 v[{b+4*k}:{b+4*k+3}], v{HAD+k} offset:{lo}")
            else:          a.i(f"ds_read_b128 v[{b+4*k}:{b+4*k+3}], v{HAD2+k} offset:{lo-65536}")
    def dots(c):
        b = RAW + 16*c
        for d in range(16):
            a.i(f"v_dot2c_f32_bf16 v{VSUM}, s{S_ONES}, v{b+d}")
            a.i(f"v_dot2c_f32_bf16 v{VSQ}, v{b+d}, v{b+d}")
    wait_for("x0")
    rd(0)
    for c in range(7):
        if c + 4 <= 6: xdma(c + 4)
        if c == 2:
            stamp(a, 12, SWS, dbg, tmp_v=12)
            lds_flag(a, XIS, 1, t+8)
        if c < 6:
            wait_for(f"x{c+1}")
            rd(c+1)
            a.i("s_waitcnt lgkmcnt(4)")
        else:
            a.i("s_waitcnt lgkmcnt(0)")
        dots(c)
    stamp(a, 1, SWS, dbg, tmp_v=12)
    a.i("s_nop 2")
    a.i(f"v_mov_b32 v{VU}, v{VSUM}")
    a.i(f"v_mov_b32 v{VU+1}, v{VSQ}")
    a.i("s_nop 1")
    a.i(f"v_permlane32_swap_b32 v{VSUM}, v{VU}")
    a.i(f"v_permlane32_swap_b32 v{VSQ}, v{VU+1}")
    a.i("s_nop 1")
    a.i(f"v_add_f32 v{VSUM}, v{VSUM}, v{VU}")
    a.i(f"v_add_f32 v{VSQ}, v{VSQ}, v{VU+1}")
    a.i(f"v_mul_f32 v{VSUM}, {f2u(1.0/448):#x}, v{VSUM}")
    a.i(f"v_mul_f32 v{VSQ}, {f2u(1.0/448):#x}, v{VSQ}")
    a.i(f"v_fma_f32 v{VSQ}, -v{VSUM}, v{VSUM}, v{VSQ}")
    a.i(f"v_max_f32 v{VSQ}, 0, v{VSQ}")
    a.i(f"v_add_f32 v{VSQ}, {f2u(1e-5):#x}, v{VSQ}")
    a.i(f"v_rsq_f32 v{VR}, v{VSQ}")
    a.i(f"s_lshl_b32 s12, s{S_W}, 2")
    a.i(f"s_add_u32 s12, s12, {LSY + XRDY}")
    a.i(f"v_mov_b32 v{t+8}, s12")
    a.i(f"v_mul_f32 v{VNM}, v{VSUM}, v{VR}")
    a.i(f"v_sub_f32 v{VNM}, 0, v{VNM}")
    a.i(f"s_lshl_b32 s12, s{S_W}, 9")
    a.i(f"s_add_u32 s12, s12, {STATS}")
    a.i(f"v_lshrrev_b32 v{t+2}, 1, v{VLANE16}")
    a.i(f"v_add_u32 v{t+2}, s12, v{t+2}")
    a.i(f"ds_write_b64 v{t+2}, v[{VR}:{VR+1}]")
    a.i("s_waitcnt lgkmcnt(0)")
    lds_flag(a, STT, 1, t+4)
    for p in range(5):
        a.i(f"buffer_load_dwordx4 v[{VDUM}:{VDUM+3}], v{VPQ}, s[{SWC}:{SWC+3}], s{S_TMP} offen")
        a.i(f"s_add_u32 s{S_TMP}, s{S_TMP}, {64*2688}")
    for c in range(2, 7):
        for k in range(4):
            src = RAW + 16*c + 4*k
            for x in norm(src, HN[k & 1]): a.i(x)
            lo = c*XS
            if lo < 65536: a.i(f"ds_write_b128 v{HAD+k}, v[{HN[k & 1]}:{HN[k & 1]+3}] offset:{lo}")
            else:          a.i(f"ds_write_b128 v{HAD2+k}, v[{HN[k & 1]}:{HN[k & 1]+3}] offset:{lo-65536}")
        a.i(f"v_mov_b32 v{t+9}, {c+1}")
        for _ in range(2 if c in (2, 3) else 1):
            a.i(f"buffer_load_dwordx4 v[{VDUM}:{VDUM+3}], v{VPF}, s[{SM}:{SM+3}], s{S_TMP+1} offen")
            a.i(f"s_add_u32 s{S_TMP+1}, s{S_TMP+1}, {64*3584}")
        a.i("s_waitcnt lgkmcnt(0)")
        a.i(f"ds_write_b32 v{t+8}, v{t+9}")
    stamp(a, 14, SWS, dbg and not FUSED[0], tmp_v=12)
    a.i(f"s_cmp_lt_u32 s2, 196")
    a.i(f"s_cselect_b32 s{SM}, s28, s20")
    a.i(f"s_cselect_b32 s{SM+1}, s29, s21")
    a.i(f"s_cselect_b32 s12, 0, 196")
    a.i(f"s_mov_b32 s{SM+2}, {448*896}")
    a.i(f"s_cselect_b32 s{SM+2}, {1792*896}, s{SM+2}")
    a.i(f"s_mov_b32 s{SM+3}, 0x20000")
    a.i(f"s_sub_u32 s12, s2, s12")
    a.i(f"s_cmp_ge_u32 s2, 245")
    a.i(f"s_cselect_b32 s12, 0, s12")
    a.i(f"s_cselect_b32 s{SM+2}, 0, s{SM+2}")
    a.i(f"s_lshl_b32 s12, s12, 13")
    a.i(f"s_lshl_b32 s13, s{S_W}, 11")
    a.i(f"s_add_u32 s12, s12, s13")
    a.i(f"buffer_load_dwordx4 v[{VDUM}:{VDUM+3}], v{VLANE16}, s[{SM}:{SM+3}], s12 offen")
    a.i(f"buffer_load_dwordx4 v[{VDUM}:{VDUM+3}], v{VLANE16}, s[{SM}:{SM+3}], s12 offen offset:1024")
    if FUSED[0]:
        get_tag(a, 2, 80)
        a.i(f"v_mov_b32 v2, {LSY + 128}")
        a.i(f"v_mov_b32 v3, s{S_TAG}")
        a.i(f"ds_write_b32 v2, v3")
    ST = 40
    a.i(f"s_cmp_eq_u32 s{S_W}, 3")
    a.i("s_cbranch_scc1 L1_hs_h")
    a.i(f"s_mul_i32 s{S_TMP+2}, s{S_CG}, 3")
    a.i(f"s_add_u32 s{S_TMP+2}, s{S_TMP+2}, s{S_W}")
    a.i(f"s_lshl_b32 s{S_TMP+2}, s{S_TMP+2}, 17")
    a.i(f"s_lshl_b32 s{S_TMP+3}, s{S_RT}, 13")
    a.i(f"s_add_u32 s{S_TMP+2}, s{S_TMP+2}, s{S_TMP+3}")
    a.i(f"s_lshl_b32 s12, s{S_W}, 12")
    a.i(f"s_add_u32 s12, s12, {STG}")
    a.i(f"v_add_u32 v{t+2}, s12, v{VLANE16}")
    for ph in range(2):
        lds_spin(a, STA, ph+1, t+4)
        for j in range(4):
            a.i(f"ds_read_b128 v[{ST+16*ph+4*j}:{ST+16*ph+4*j+3}], v{t+2} offset:{1024*j}")
        a.i("s_waitcnt lgkmcnt(0)")
        if ph == 0: lds_flag(a, STC, 1, t+4)
        for j in range(4):
            a.i(f"buffer_store_dwordx4 v[{ST+16*ph+4*j}:{ST+16*ph+4*j+3}], v{VLANE16}, s[{SWS}:{SWS+3}], s{S_TMP+2} offen offset:{1024*j} sc1")
        a.i(f"s_add_u32 s{S_TMP+2}, s{S_TMP+2}, 4096")
    a.i("s_waitcnt vmcnt(0)")
    stamp(a, 15, SWS, dbg and False, tmp_v=12)
    if FUSED[0]: qkv_flag(a)
    a.label("L1_hs_h")
    lds_spin(a, STA, 3, t+4)
    a.i(f"s_mov_b32 s{S_TMP+5}, s12")
    a.i(f"s_lshl_b32 s12, s{S_W}, 13")
    a.i(f"s_add_u32 s12, s12, {WB}")
    a.i(f"v_add_u32 v{t+2}, s12, v{VLANE16}")
    for j in range(8):
        a.i(f"ds_read_b128 v[{ST+4*j}:{ST+4*j+3}], v{t+2} offset:{1024*j}")
    a.i("s_waitcnt lgkmcnt(0)")
    a.i("s_barrier")
    a.i(f"s_cmp_eq_u32 s{S_TMP+5}, 3")
    a.i("s_cbranch_scc0 L1_hs_done")
    a.i(f"s_add_u32 s{S_TMP+3}, s{S_FT0}, s{S_W}")
    a.i(f"s_add_u32 s{S_TMP+3}, s{S_TMP+3}, 1")
    a.i(f"s_cmp_eq_u32 s{S_W}, 3")
    a.i(f"s_cselect_b32 s{S_TMP+3}, s{S_FT0}, s{S_TMP+3}")
    a.i(f"s_lshl_b32 s{S_TMP+3}, s{S_TMP+3}, 11")
    a.i(f"s_mul_i32 s{S_TMP+2}, s{S_RT}, {4*112*1024}")
    a.i(f"s_add_u32 s{S_TMP+2}, s{S_TMP+2}, s{S_TMP+3}")
    a.i(f"s_add_u32 s{S_TMP+2}, s{S_TMP+2}, {HF}")
    for i in range(4):
        a.i(f"buffer_store_dwordx4 v[{ST+8*i}:{ST+8*i+3}], v{VLANE16}, s[{SWS}:{SWS+3}], s{S_TMP+2} offen sc1")
        a.i(f"buffer_store_dwordx4 v[{ST+8*i+4}:{ST+8*i+7}], v{VLANE16}, s[{SWS}:{SWS+3}], s{S_TMP+2} offen offset:1024 sc1")
        a.i(f"s_add_u32 s{S_TMP+2}, s{S_TMP+2}, {112*1024}")
    a.label("L1_hs_done")
    if FUSED[0]:
        a.i(f"s_lshl_b32 s13, s{S_RT}, 8")
        a.i(f"s_lshl_b32 s14, s{S_CG}, 2")
        a.i(f"s_add_u32 s13, s13, s14")
        a.i(f"s_add_u32 s{S_TMP+6}, s13, {FLG + FH_OFF}")
        a.i("s_waitcnt vmcnt(0)")
        last_arriver_flag(a, 20, 4, S_TMP+6, 2, SWS, 12)
        a.i("s_branch L2_ffn_entry")
    else:
        a.i("s_endpgm")
    VU = save

def k1(dbg=False, a=None):
    a = a or Asm()
    DBG[0] = dbg
    name = "k1_kernel" if not FUSED[0] else KNAME
    header(a, name)
    a.i("s_cmp_ge_u32 s2, 256")
    a.i("s_cbranch_scc1 L1_end")
    a.i("s_load_dwordx16 s[16:31], s[0:1], 0")
    a.i("s_load_dwordx2 s[32:33], s[0:1], 80")
    if FUSED[0]:
        a.i(f"s_load_dwordx4 s[{S_OUT}:{S_OUT+3}], s[0:1], 64")
        a.i("s_memrealtime s[94:95]")
    a.i("s_and_b32 s3, s2, 7")
    a.i("s_lshr_b32 s4, s2, 3")
    a.i("s_and_b32 s5, s3, 3")
    a.i("s_lshl_b32 s5, s5, 2")
    a.i("s_and_b32 s6, s4, 3")
    a.i(f"s_add_u32 s{S_RT}, s5, s6")
    a.i("s_lshr_b32 s6, s3, 2")
    a.i("s_lshl_b32 s6, s6, 3")
    a.i("s_lshr_b32 s7, s4, 2")
    a.i(f"s_add_u32 s{S_CG}, s6, s7")
    a.i(f"v_lshrrev_b32 v1, 6, v0")
    a.i(f"v_and_b32 v2, 63, v0")
    a.i(f"v_readfirstlane_b32 s{S_W}, v1")
    a.i(f"v_lshlrev_b32 v{VLANE16}, 4, v2")
    a.i(f"s_mov_b32 s{S_ONES}, {ONES:#x}")
    a.i(f"s_lshr_b32 s{S_ROLE}, s{S_W}, 2")
    a.i(f"s_and_b32 s{S_W}, s{S_W}, 3")
    a.i(f"s_mov_b32 s{S_MASK}, 0xffff0000")
    a.i(f"s_lshr_b32 s10, s{S_CG}, 1")
    a.i(f"s_mul_i32 s10, s10, 7")
    a.i(f"s_and_b32 s11, s{S_CG}, 1")
    a.i(f"s_sub_u32 s{S_NF}, 4, s11")
    a.i(f"s_lshl_b32 s11, s11, 2")
    a.i(f"s_add_u32 s{S_FT0}, s10, s11")
    a.i(f"v_lshlrev_b32 v2, 2, v2")
    a.i(f"v_add_u32 v2, {LSY}, v2")
    a.i(f"v_mov_b32 v3, 0")
    a.i(f"ds_write_b32 v2, v3")
    a.i("s_waitcnt lgkmcnt(0)")
    srd(a, SX, 16, 2048*896)
    srd(a, SWS, 32, WS_SRD)
    if FUSED[0]:
        a.i(f"s_or_b32 s{S_TAG}, s94, 1")
        a.i(f"s_or_b32 s12, s2, s{S_W}")
        a.i(f"s_or_b32 s12, s12, s{S_ROLE}")
        a.i(f"s_cmp_lg_u32 s12, 0")
        a.i("s_cbranch_scc1 L1_notag")
        a.i(f"s_mov_b32 s{SM}, s{S_DBG}")
        a.i(f"s_mov_b32 s{SM+1}, s{S_DBG+1}")
        a.i(f"s_mov_b32 s{SM+2}, 256")
        a.i(f"s_mov_b32 s{SM+3}, 0x20000")
        a.i(f"v_mov_b32 v2, s{S_TAG}")
        a.i(f"v_mov_b32 v3, 0")
        a.i("s_mov_b64 exec, 1")
        a.i(f"buffer_store_dword v2, v3, s[{SM}:{SM+3}], 0 offen sc0 sc1")
        a.i("s_mov_b64 exec, -1")
        a.label("L1_notag")
    a.i("s_barrier")
    a.i(f"s_cmp_lg_u32 s{S_ROLE}, 0")
    a.i("s_cbranch_scc1 L1_helper")
    stamp(a, 0, SWS, dbg, tmp_v=12)
    compute(a, dbg)
    a.label("L1_end")
    a.i("s_endpgm")
    a.label("L1_helper")
    helper(a, dbg)
    if not FUSED[0]: footer(a, name, 256)
    return a

if __name__ == "__main__":
    a = k1()
    open("k1.s", "w").write('.amdgcn_target "amdgcn-amd-amdhsa--gfx950"\n' + a.text())
    errs = check_all(a.lines, "k1")
    print("\n".join(errs[:40])); print(len(errs), "hazard findings")
```

```python
from common import *

import os
BIAS = float(os.environ.get('K2_BIAS', '96'))
NOEXP = os.environ.get('K2_NOEXP'); NOMF = os.environ.get('K2_NOMFMA')
LDS2 = 131072
RB = 65536
Q = 8; O = 40; S = [104, 120]; P = 136; K = 144; V = 176
KT = 208; T2 = 216; T3 = 232
VL16 = 1
S_H, S_QB, S_W, S_WL, S_XCD, S_SLOT = 34, 35, 36, 37, 38, 39
SK, SV, SWS, SX, SB2 = 40, 44, 48, 52, 56
S_KO, S_VO, S_IT = 60, 61, 62
S_HI = 64
S_T = 70

FUSED = [False]
def SC(): return ' sc1' if FUSED[0] else ''
def mf(d, a_, b_, c_):
    cs = "0" if c_ is None else f"v[{c_}:{c_+15}]"
    return f"v_mfma_f32_32x32x16_bf16 v[{d}:{d+15}], v[{a_}:{a_+3}], v[{b_}:{b_+3}], {cs}"

SCHED = os.environ.get('K2_SCHED', 'pair')
def step(a, tl, qt, first_skip=False):
    st = tl*4 + qt
    sb = st & 1; nb = sb ^ 1
    nq = (qt + 1) & 3; nk = tl if qt < 3 else (tl + 1) & 3
    pq = (qt - 1) & 3; pv = tl if qt > 0 else (tl - 1) & 3
    Sc = S[sb]; Sn = S[nb]
    def e(i):
        if NOEXP: a.i(f"v_mov_b32 v{Sc+i}, v{Sc+i}"); a.i(f"v_mov_b32 v{Sc+i}, v{Sc+i}")
        else: a.i(f"v_exp_f32 v{Sc+i}, v{Sc+i}")
    def c(i): a.i(f"v_cvt_pk_bf16_f32 v{P+i}, v{Sc+2*i}, v{Sc+2*i+1}")
    def m(x):
        if NOMF: a.i("s_nop 1")
        else: a.i(x)
    def kload():
        a.i(f"buffer_load_dwordx4 v[{K+8*tl}:{K+8*tl+3}], v{VL16}, s[{SK}:{SK+3}], s{S_KO} offen{SC()}")
        a.i(f"buffer_load_dwordx4 v[{K+8*tl+4}:{K+8*tl+7}], v{VL16}, s[{SK}:{SK+3}], s{S_KO} offen offset:1024{SC()}")
        a.i(f"s_add_u32 s{S_KO}, s{S_KO}, 2048")
    def vload():
        b = V + 8*((tl - 1) & 3)
        a.i(f"buffer_load_dwordx4 v[{b}:{b+3}], v{VL16}, s[{SV}:{SV+3}], s{S_VO} offen{SC()}")
        a.i(f"buffer_load_dwordx4 v[{b+4}:{b+7}], v{VL16}, s[{SV}:{SV+3}], s{S_VO} offen offset:1024{SC()}")
        a.i(f"s_add_u32 s{S_VO}, s{S_VO}, 2048")
    MS0 = mf(Sn, K+8*nk, Q+8*nq, None)
    MS1 = mf(Sn, K+8*nk+4, Q+8*nq+4, Sn)
    MP1 = mf(O+16*pq, V+8*pv+4, P+4, O+16*pq)
    MP0 = mf(O+16*qt, V+8*tl, P, O+16*qt)
    def mp1():
        if first_skip:
            a.i(f"s_cmp_eq_u32 s{S_IT}, 0")
            a.i(f"s_cbranch_scc1 L2_skip_first")
        m(MP1)
        if first_skip: a.label("L2_skip_first")
    if SCHED == 'even':
        if qt == 3: a.i("s_waitcnt vmcnt(10)")
        m(MS0)
        for i in range(0, 4): e(i)
        c(0); c(1)
        if qt == 3: kload()
        mp1()
        for i in range(4, 8): e(i)
        c(2); c(3)
        if qt == 1: vload()
        m(MS1)
        for i in range(8, 12): e(i)
        c(4); c(5)
        if qt == 0: a.i("s_waitcnt vmcnt(10)")
        m(MP0)
        for i in range(12, 16): e(i)
        c(6); c(7)
    else:
        G = int(os.environ.get('K2_GAP', '3'))
        if qt == 3: a.i("s_waitcnt vmcnt(10)")
        m(MS0)
        for i in range(0, G): e(i)
        m(MS1)
        for i in range(G, 8): e(i)
        c(0); c(1); c(2); c(3)
        if qt == 3: kload()
        if qt == 1: vload()
        mp1()
        for i in range(8, 8+G): e(i)
        if qt == 0: a.i("s_waitcnt vmcnt(10)")
        m(MP0)
        for i in range(8+G, 16): e(i)
        c(4); c(5); c(6); c(7)

def rowmax16(a, src, dst):
    a.i(f"v_max3_f32 v{dst}, v{src}, v{src+1}, v{src+2}")
    for k in range(3, 15, 2):
        a.i(f"v_max3_f32 v{dst}, v{dst}, v{src+k}, v{src+k+1}")
    a.i(f"v_max_f32 v{dst}, v{dst}, v{src+15}")

def attention(a, dbg):
    t = 248
    if os.environ.get('K2_PRIO', '1') != '0': a.i(f"s_setprio {os.environ.get('K2_PRIO', '1')}")
    a.i(f"s_lshl_b32 s{S_T}, s{S_H}, 6")
    a.i(f"s_lshl_b32 s{S_T+1}, s{S_WL}, 4")
    a.i(f"s_add_u32 s{S_T}, s{S_T}, s{S_T+1}")
    a.i(f"s_lshl_b32 s{S_T}, s{S_T}, 11")
    a.i(f"s_add_u32 s{S_T+1}, s{S_T}, {KF}")
    srd(a, SK, 32, 32768, off=f"s{S_T+1}")
    a.i(f"s_add_u32 s{S_T+1}, s{S_T}, {VF}")
    srd(a, SV, 32, 32768, off=f"s{S_T+1}")
    a.i(f"s_lshl_b32 s{S_T}, s{S_H}, 6")
    a.i(f"s_lshl_b32 s{S_T+1}, s{S_QB}, 2")
    a.i(f"s_add_u32 s{S_T}, s{S_T}, s{S_T+1}")
    a.i(f"s_lshl_b32 s{S_T}, s{S_T}, 11")
    a.i(f"s_add_u32 s{S_T+2}, s{S_T}, {QF}")
    a.i(f"s_add_u32 s{S_T+3}, s{S_T+2}, 4096")
    if FUSED[0]:
        for r in range(O, O+64): a.i(f"v_mov_b32 v{r}, 0")
        for x_ in range(48): assert (x_*43) >> 7 == x_ // 3
        for off_, r_ in ((0, S_T+5), (16, S_T+6), (32, S_T+7)):
            a.i(f"s_add_u32 s{r_}, s{S_H}, {off_}")
            a.i(f"s_mul_i32 s{r_}, s{r_}, 43")
            a.i(f"s_lshr_b32 s{r_}, s{r_}, 7")
        a.i(f"s_cmp_lg_u32 s{S_WL}, 0")
        a.i("s_cbranch_scc1 L2_attn_follow")
        a.i(f"v_lshrrev_b32 v{t}, 4, v{VL16}")
        a.i(f"v_and_b32 v{t+1}, 15, v{t}")
        a.i(f"v_lshlrev_b32 v{t+1}, 2, v{t+1}")
        a.i(f"s_lshl_b32 s{S_T+6}, s{S_T+6}, 8")
        a.i(f"s_lshl_b32 s{S_T+7}, s{S_T+7}, 8")
        a.i(f"s_lshl_b32 s{S_T+5}, s{S_T+5}, 8")
        a.i(f"s_lshl_b32 s{S_T+8}, s{S_QB}, 2")
        a.i(f"s_add_u32 s{S_T+5}, s{S_T+5}, s{S_T+8}")
        a.i(f"v_add_u32 v{t+2}, s{S_T+6}, v{t+1}")
        a.i(f"v_add_u32 v{t+3}, s{S_T+7}, v{t+1}")
        a.i(f"v_mov_b32 v{t+4}, s{S_T+5}")
        a.i(f"v_cmp_gt_u32 vcc, 16, v{t}")
        a.i("s_nop 1")
        a.i(f"v_cndmask_b32 v{t+3}, v{t+3}, v{t+2}, vcc")
        a.i(f"v_cmp_gt_u32 vcc, 32, v{t}")
        a.i("s_nop 1")
        a.i(f"v_cndmask_b32 v{t+4}, v{t+4}, v{t+3}, vcc")
        poll_flags(a, t+4, t+5, SWS, S_T+8)
        lds_signal(a, 4, t)
        a.i("s_branch L2_attn_go")
        a.label("L2_attn_follow")
        lds_wait(a, 4, t, S_T+8)
        a.label("L2_attn_go")
        stamp(a, 4, SWS, dbg, tmp_v=252)
    for qt in range(4):
        so = S_T+2 if qt < 2 else S_T+3
        for h in range(2):
            a.i(f"buffer_load_dwordx4 v[{Q+8*qt+4*h}:{Q+8*qt+4*h+3}], v{VL16}, s[{SWS}:{SWS+3}], s{so} offen offset:{(qt&1)*2048+h*1024}{SC()}")
    a.i(f"s_lshl_b32 s{S_T+4}, s{S_H}, 17")
    a.i(f"s_add_u32 s{S_T+4}, s{S_T+4}, {KF}")
    a.i(f"buffer_load_dwordx4 v[{KT}:{KT+3}], v{VL16}, s[{SWS}:{SWS+3}], s{S_T+4} offen{SC()}")
    a.i(f"buffer_load_dwordx4 v[{KT+4}:{KT+7}], v{VL16}, s[{SWS}:{SWS+3}], s{S_T+4} offen offset:1024{SC()}")
    a.i(f"s_mov_b32 s{S_KO}, 0")
    for i in range(4):
        a.i(f"buffer_load_dwordx4 v[{K+8*i}:{K+8*i+3}], v{VL16}, s[{SK}:{SK+3}], s{S_KO} offen{SC()}")
        a.i(f"buffer_load_dwordx4 v[{K+8*i+4}:{K+8*i+7}], v{VL16}, s[{SK}:{SK+3}], s{S_KO} offen offset:1024{SC()}")
        if i < 3:
            a.i(f"buffer_load_dwordx4 v[{V+8*i}:{V+8*i+3}], v{VL16}, s[{SV}:{SV+3}], s{S_KO} offen{SC()}")
            a.i(f"buffer_load_dwordx4 v[{V+8*i+4}:{V+8*i+7}], v{VL16}, s[{SV}:{SV+3}], s{S_KO} offen offset:1024{SC()}")
        a.i(f"s_add_u32 s{S_KO}, s{S_KO}, 2048")
    a.i(f"s_mov_b32 s{S_VO}, {3*2048}")
    if not FUSED[0]:
        for r in range(O, O+64): a.i(f"v_mov_b32 v{r}, 0")
    a.i(f"s_mov_b32 s{S_IT}, 0")
    a.i("s_waitcnt vmcnt(14)")
    TD = [S[0], S[1], T2, T3]
    for qt in range(4): a.i(mf(TD[qt], KT, Q+8*qt, None))
    for qt in range(4): a.i(mf(TD[qt], KT+4, Q+8*qt+4, TD[qt]))
    a.i("s_nop 8")
    for qt in range(4):
        rowmax16(a, TD[qt], t+qt)
    for qt in range(4): a.i(f"v_mov_b32 v{t+4+qt}, v{t+qt}")
    a.i("s_nop 1")
    for qt in range(4): a.i(f"v_permlane32_swap_b32 v{t+qt}, v{t+4+qt}")
    a.i("s_nop 1")
    for qt in range(4): a.i(f"v_max_f32 v{t+qt}, v{t+qt}, v{t+4+qt}")
    for qt in range(4): a.i(f"v_sub_f32 v{t+qt}, {f2u(-BIAS):#x}, v{t+qt}")
    for qt in range(4): a.i(f"v_cvt_pk_bf16_f32 v{t+qt}, v{t+qt}, 0")
    for qt in range(4): a.i(f"v_cndmask_b32 v{Q+8*qt+6}, v{Q+8*qt+6}, v{t+qt}, s[{S_HI}:{S_HI+1}]")
    a.i("s_waitcnt vmcnt(12)")
    a.i(mf(S[0], K, Q, None))
    a.i(mf(S[0], K+4, Q+4, S[0]))
    a.i("s_nop 7")
    a.i("s_nop 3")
    stamp(a, 5, SWS, dbg, tmp_v=252)
    a.label("L2_loop")
    for tl in range(4):
        for qt in range(4):
            step(a, tl, qt, first_skip=(tl == 0 and qt == 0))
    a.i(f"s_add_u32 s{S_IT}, s{S_IT}, 1")
    a.i(f"s_cmp_lt_u32 s{S_IT}, 4")
    a.i("s_cbranch_scc1 L2_loop")
    a.i("s_nop 1")
    a.i(mf(O+48, V+8*3+4, P+4, O+48))
    stamp(a, 6, SWS, dbg, tmp_v=252)
    a.i(f"s_lshl_b32 s{S_T}, s{S_WL}, 12")
    a.i(f"v_add_u32 v{t}, s{S_T}, v{VL16}")
    for qt in range(4):
        if qt == 3:
            a.i("s_nop 7")
        for g in range(4):
            a.i(f"ds_write_b128 v{t}, v[{O+16*qt+4*g}:{O+16*qt+4*g+3}] offset:{qt*16384+g*1024}")
    a.i("s_waitcnt vmcnt(0) lgkmcnt(0)")
    a.i("s_barrier")
    a.i(f"s_lshl_b32 s{S_T}, s{S_WL}, 14")
    a.i(f"v_add_u32 v{t}, s{S_T}, v{VL16}")
    for src in range(4):
        for g in range(4):
            a.i(f"ds_read_b128 v[{O+16*src+4*g}:{O+16*src+4*g+3}], v{t} offset:{src*4096+g*1024}")
    a.i("s_waitcnt lgkmcnt(0)")
    for r in range(16):
        a.i(f"v_add_f32 v{O+r}, v{O+r}, v{O+16+r}")
        a.i(f"v_add_f32 v{O+32+r}, v{O+32+r}, v{O+48+r}")
    for r in range(16):
        a.i(f"v_add_f32 v{O+r}, v{O+r}, v{O+32+r}")
    a.i(f"s_mov_b32 s{S_T+6}, 0")
    a.label("L2_norm")
    a.i(f"v_mov_b32 v{t}, v{O+12}")
    a.i(f"v_mov_b32 v{t+1}, v{O+12}")
    a.i("s_nop 1")
    a.i(f"v_permlane32_swap_b32 v{t}, v{t+1}")
    a.i("s_nop 1")
    a.i(f"v_rcp_f32 v{t+2}, v{t+1}")
    a.i("s_nop 0")
    for r in range(16):
        a.i(f"v_mul_f32 v{O+r}, v{O+r}, v{t+2}")
    a.i(f"s_cmp_lg_u32 s{S_T+6}, 0")
    a.i("s_cbranch_scc1 L2_store")
    a.i(f"v_mov_b32 v{t+3}, {f2u(2.0**-100):#x}")
    a.i(f"v_mov_b32 v{t+4}, {f2u(2.0**120):#x}")
    a.i(f"v_cmp_nge_f32 vcc, v{t+1}, v{t+3}")
    a.i(f"v_cmp_nle_f32 s[{S_T+8}:{S_T+9}], v{t+1}, v{t+4}")
    a.i(f"s_or_b64 s[{S_T+8}:{S_T+9}], s[{S_T+8}:{S_T+9}], vcc")
    a.i(f"v_mul_f32 v{t+5}, 0, v{O}")
    for r in range(1, 16):
        a.i(f"v_fma_f32 v{t+5}, v{O+r}, 0, v{t+5}")
    a.i(f"v_cmp_u_f32 vcc, v{t+5}, v{t+5}")
    a.i(f"s_or_b64 s[{S_T+8}:{S_T+9}], s[{S_T+8}:{S_T+9}], vcc")
    a.i(f"s_cmp_lg_u64 s[{S_T+8}:{S_T+9}], 0")
    a.i("s_cbranch_scc1 L2_slow")
    a.label("L2_store")
    for p in range(8):
        a.i(f"v_cvt_pk_bf16_f32 v{P+p}, v{O+2*p}, v{O+2*p+1}")
    a.i(f"s_lshl_b32 s{S_T}, s{S_QB}, 2")
    a.i(f"s_add_u32 s{S_T}, s{S_T}, s{S_WL}")
    a.i(f"s_lshl_b32 s{S_T}, s{S_T}, 4")
    a.i(f"s_add_u32 s{S_T}, s{S_T}, s{S_H}")
    a.i(f"s_lshl_b32 s{S_T}, s{S_T}, 11")
    a.i(f"s_add_u32 s{S_T}, s{S_T}, {OF}")
    a.i(f"buffer_store_dwordx4 v[{P}:{P+3}], v{VL16}, s[{SWS}:{SWS+3}], s{S_T} offen sc1")
    a.i(f"buffer_store_dwordx4 v[{P+4}:{P+7}], v{VL16}, s[{SWS}:{SWS+3}], s{S_T} offen offset:1024 sc1")
    if FUSED[0]:
        a.i(f"s_lshl_b32 s{S_T}, s{S_QB}, 8")
        a.i(f"s_lshl_b32 s{S_T+1}, s{S_H}, 2")
        a.i(f"s_add_u32 s{S_T}, s{S_T}, s{S_T+1}")
        a.i(f"s_add_u32 s{S_T}, s{S_T}, {FLG + FO_OFF}")
        a.i("s_waitcnt vmcnt(0)")
        last_arriver_flag(a, 12, 4, S_T, t, SWS, S_T+1)
    stamp(a, 7, SWS, dbg, tmp_v=252)
    a.i("s_endpgm")
    a.label("L2_slow")
    a.i(f"s_lshl_b32 s{S_T}, s{S_WL}, 11")
    a.i(f"s_add_u32 s{S_T}, s{S_T}, s{S_T+2}")
    a.i(f"buffer_load_dwordx4 v[{Q}:{Q+3}], v{VL16}, s[{SWS}:{SWS+3}], s{S_T} offen{SC()}")
    a.i(f"buffer_load_dwordx4 v[{Q+4}:{Q+7}], v{VL16}, s[{SWS}:{SWS+3}], s{S_T} offen offset:1024{SC()}")
    a.i(f"v_mov_b32 v{t}, 0xff800000")
    a.i(f"s_mov_b32 s{S_T+1}, s{S_T+4}")
    a.i(f"s_mov_b32 s{S_IT}, 0")
    a.label("L2_slow1")
    a.i(f"buffer_load_dwordx4 v[{KT}:{KT+3}], v{VL16}, s[{SWS}:{SWS+3}], s{S_T+1} offen{SC()}")
    a.i(f"buffer_load_dwordx4 v[{KT+4}:{KT+7}], v{VL16}, s[{SWS}:{SWS+3}], s{S_T+1} offen offset:1024{SC()}")
    a.i("s_waitcnt vmcnt(0)")
    a.i(mf(S[0], KT, Q, None))
    a.i(mf(S[0], KT+4, Q+4, S[0]))
    a.i("s_nop 7")
    a.i("s_nop 3")
    rowmax16(a, S[0], t+1)
    a.i(f"v_max_f32 v{t}, v{t}, v{t+1}")
    a.i(f"s_add_u32 s{S_T+1}, s{S_T+1}, 2048")
    a.i(f"s_add_u32 s{S_IT}, s{S_IT}, 1")
    a.i(f"s_cmp_lt_u32 s{S_IT}, 64")
    a.i("s_cbranch_scc1 L2_slow1")
    a.i(f"v_mov_b32 v{t+1}, v{t}")
    a.i("s_nop 1")
    a.i(f"v_permlane32_swap_b32 v{t}, v{t+1}")
    a.i("s_nop 1")
    a.i(f"v_max_f32 v{t}, v{t}, v{t+1}")
    a.i(f"v_sub_f32 v{t}, 0, v{t}")
    a.i(f"v_cvt_pk_bf16_f32 v{t+1}, v{t}, 0")
    a.i(f"v_lshlrev_b32 v{t+2}, 16, v{t+1}")
    a.i(f"v_sub_f32 v{t+3}, v{t}, v{t+2}")
    a.i(f"v_cvt_pk_bf16_f32 v{t+4}, v{t+3}, 0")
    a.i(f"v_lshlrev_b32 v{t+5}, 16, v{t+4}")
    a.i(f"v_sub_f32 v{t+3}, v{t+3}, v{t+5}")
    a.i(f"v_cvt_pk_bf16_f32 v{t+6}, v{t+3}, 0")
    a.i(f"v_or_b32 v{t+1}, v{t+1}, v{t+5}")
    a.i(f"v_cndmask_b32 v{Q+6}, v{Q+6}, v{t+1}, s[{S_HI}:{S_HI+1}]")
    a.i(f"v_cndmask_b32 v{Q+7}, v{Q+7}, v{t+6}, s[{S_HI}:{S_HI+1}]")
    for r in range(O, O+16): a.i(f"v_mov_b32 v{r}, 0")
    a.i(f"s_mov_b32 s{S_T+1}, s{S_T+4}")
    a.i(f"s_mov_b32 s{S_IT}, 0")
    a.label("L2_slow2")
    a.i(f"s_add_u32 s{S_T}, s{S_T+1}, {VF-KF}")
    a.i(f"buffer_load_dwordx4 v[{KT}:{KT+3}], v{VL16}, s[{SWS}:{SWS+3}], s{S_T+1} offen{SC()}")
    a.i(f"buffer_load_dwordx4 v[{KT+4}:{KT+7}], v{VL16}, s[{SWS}:{SWS+3}], s{S_T+1} offen offset:1024{SC()}")
    a.i(f"buffer_load_dwordx4 v[{T2}:{T2+3}], v{VL16}, s[{SWS}:{SWS+3}], s{S_T} offen{SC()}")
    a.i(f"buffer_load_dwordx4 v[{T2+4}:{T2+7}], v{VL16}, s[{SWS}:{SWS+3}], s{S_T} offen offset:1024{SC()}")
    a.i("s_waitcnt vmcnt(0)")
    a.i(mf(S[0], KT, Q, None))
    a.i(mf(S[0], KT+4, Q+4, S[0]))
    a.i("s_nop 7")
    a.i("s_nop 3")
    for i in range(16): a.i(f"v_exp_f32 v{S[0]+i}, v{S[0]+i}")
    a.i("s_nop 0")
    for i in range(8): a.i(f"v_cvt_pk_bf16_f32 v{P+i}, v{S[0]+2*i}, v{S[0]+2*i+1}")
    a.i("s_nop 1")
    a.i(mf(O, T2, P, O))
    a.i(mf(O, T2+4, P+4, O))
    a.i(f"s_add_u32 s{S_T+1}, s{S_T+1}, 2048")
    a.i(f"s_add_u32 s{S_IT}, s{S_IT}, 1")
    a.i(f"s_cmp_lt_u32 s{S_IT}, 64")
    a.i("s_cbranch_scc1 L2_slow2")
    a.i("s_nop 7")
    a.i("s_nop 7")
    a.i(f"s_mov_b32 s{S_T+6}, 1")
    a.i("s_branch L2_norm")

AF = 8
HB = 72
WFB = [128, 136]
XR = 144
BR = 152
VA = 160
VW1, VW2 = 161, 162
VT0, VT1 = 163, 164
SW2 = 60
S_M0 = 66; S_WO = 67; S_H0 = 68; S_H1 = 69

def w2_lane_setup(a, t):
    a.i(f"v_and_b32 v{t}, 63, v0")
    a.i(f"v_lshrrev_b32 v{t+1}, 3, v{t}")
    a.i(f"v_bfe_u32 v{t+2}, v{t}, 4, 1")
    a.i(f"v_lshlrev_b32 v{t+2}, 2, v{t+2}")
    a.i(f"v_and_b32 v{t+3}, 7, v{t}")
    a.i(f"v_xor_b32 v{t+3}, v{t+3}, v{t+2}")
    a.i(f"v_lshlrev_b32 v{t+3}, 4, v{t+3}")
    a.i(f"v_mul_u32_u24 v{t+1}, 896, v{t+1}")
    a.i(f"v_add_u32 v{VW1}, v{t+1}, v{t+3}")
    a.i(f"v_add_u32 v{VW2}, {8*896 - 1024}, v{VW1}")
    a.i(f"v_lshrrev_b32 v{t+1}, 5, v{t}")
    a.i(f"v_lshlrev_b32 v{t+1}, 2, v{t+1}")
    a.i(f"v_bfe_u32 v{t+2}, v{t}, 2, 2")
    a.i(f"v_add_u32 v{t+1}, v{t+1}, v{t+2}")
    a.i(f"v_lshlrev_b32 v{t+1}, 7, v{t+1}")
    a.i(f"v_lshrrev_b32 v{t+2}, 1, v{t+2}")
    a.i(f"v_lshlrev_b32 v{t+2}, 6, v{t+2}")
    a.i(f"v_add_u32 v{t+1}, v{t+1}, v{t+2}")
    a.i(f"v_bfe_u32 v{t+2}, v{t}, 4, 1")
    a.i(f"v_lshlrev_b32 v{t+2}, 5, v{t+2}")
    a.i(f"v_add_u32 v{t+1}, v{t+1}, v{t+2}")
    a.i(f"v_and_b32 v{t+2}, 3, v{t}")
    a.i(f"v_lshlrev_b32 v{t+2}, 3, v{t+2}")
    a.i(f"v_add_u32 v{t+1}, v{t+1}, v{t+2}")
    a.i(f"v_add_u32 v{VT0}, s{S_M0}, v{t+1}")
    a.i(f"v_xor_b32 v{VT1}, 64, v{VT0}")

def ffn_issue(a, k):
    b = HB + 8*(k % 7)
    a.i(f"s_add_u32 m0, s{S_M0}, {2048*(k % 7)}")
    a.i(f"buffer_load_dwordx4 v[{b}:{b+3}], v{VA}, s[{SWS}:{SWS+3}], s{S_H0} offen{SC()}")
    a.i(f"buffer_load_dwordx4 v[{b+4}:{b+7}], v{VA}, s[{SWS}:{SWS+3}], s{S_H1} offen{SC()}")
    a.i(f"buffer_load_dwordx4 v{VW1}, s[{SW2}:{SW2+3}], s{S_WO} offen lds")
    a.i(f"buffer_load_dwordx4 v{VW2}, s[{SW2}:{SW2+3}], s{S_WO} offen offset:1024 lds")
    a.i(f"v_add_u32 v{VA}, 1024, v{VA}")
    a.i(f"s_add_u32 s{S_WO}, s{S_WO}, {16*896}")

def ffn_trreads(a, k):
    w = WFB[k & 1]; off = 2048*(k % 7)
    for ci, va in enumerate((VT0, VT1)):
        a.i(f"ds_read_b64_tr_b16 v[{w+4*ci}:{w+4*ci+1}], v{va} offset:{off}")
        a.i(f"ds_read_b64_tr_b16 v[{w+4*ci+2}:{w+4*ci+3}], v{va} offset:{off+1024}")

def wo_prep(a, t):
    a.i(f"s_lshl_b32 s{S_T}, s{S_XCD}, 2")
    a.i(f"s_add_u32 s{S_T}, s{S_T}, s{S_SLOT}")
    a.i(f"s_sub_u32 s{S_T}, s{S_T}, 28")
    a.i(f"s_lshl_b32 s{S_T}, s{S_T}, 2")
    a.i(f"s_add_u32 s{S_T}, s{S_T}, s{S_WL}")
    a.i(f"s_cmp_ge_u32 s{S_T}, 112")
    a.i("s_cbranch_scc1 L2_ffn_none")
    a.i(f"s_mul_i32 s{S_T+1}, s{S_T}, 147")
    a.i(f"s_lshr_b32 s{S_T+1}, s{S_T+1}, 10")
    a.i(f"s_mul_i32 s{S_T+2}, s{S_T+1}, 7")
    a.i(f"s_sub_u32 s{S_T+2}, s{S_T}, s{S_T+2}")
    srd(a, SW2, 20, 448*896)
    a.i(f"s_mul_i32 s{S_WO}, s{S_T+1}, {28*896}")
    a.i(f"s_lshl_b32 s{S_T+3}, s{S_T+2}, 7")
    a.i(f"s_add_u32 s{S_WO}, s{S_WO}, s{S_T+3}")
    for k in range(2):
        a.i(f"s_add_u32 m0, s{S_M0}, {2048*k}")
        a.i("s_nop 0")
        a.i(f"buffer_load_dwordx4 v{VW1}, s[{SW2}:{SW2+3}], s{S_WO} offen lds")
        a.i(f"buffer_load_dwordx4 v{VW2}, s[{SW2}:{SW2+3}], s{S_WO} offen offset:1024 lds")
        a.i(f"s_add_u32 s{S_WO}, s{S_WO}, {16*896}")
    a.i("s_waitcnt vmcnt(0)")
    ffn_trreads(a, 0)
    ffn_trreads(a, 1)
    a.i(f"v_mov_b32 v{t+4}, 0")
    a.i("s_waitcnt lgkmcnt(0)")
    for ci in range(2):
        a.i(f"v_cndmask_b32 v{WFB[1]+4*ci+2}, v{WFB[1]+4*ci+2}, v{t+4}, s[{S_HI}:{S_HI+1}]")
        a.i(f"v_cndmask_b32 v{WFB[1]+4*ci+3}, v{WFB[1]+4*ci+3}, v{t+4}, s[{S_HI}:{S_HI+1}]")
    a.i(f"s_lshl_b32 s{S_T+3}, s{S_T+2}, 16")
    a.i(f"s_lshl_b32 s{S_T+4}, s{S_T+1}, 11")
    a.i(f"s_add_u32 s{S_T+3}, s{S_T+3}, s{S_T+4}")
    a.i(f"s_add_u32 s{S_T+3}, s{S_T+3}, {WOT}")
    a.i(f"s_add_u32 s{S_T+4}, s{S_T+3}, 32768")
    for ci, so in enumerate((S_T+3, S_T+4)):
        a.i(f"buffer_store_dwordx4 v[{WFB[0]+4*ci}:{WFB[0]+4*ci+3}], v{VL16}, s[{SWS}:{SWS+3}], s{so} offen sc1")
        a.i(f"buffer_store_dwordx4 v[{WFB[1]+4*ci}:{WFB[1]+4*ci+3}], v{VL16}, s[{SWS}:{SWS+3}], s{so} offen offset:1024 sc1")
    a.i("s_branch L2_ffn_none")

def ffn(a, dbg):
    t = 248
    for task in range(128): assert (task*147) >> 10 == task // 7
    for q_ in range(32): assert (q_*37) >> 8 == q_ // 7
    a.i(f"s_lshl_b32 s{S_M0}, s{S_WL}, 14")
    a.i(f"s_add_u32 s{S_M0}, s{S_M0}, {RB}")
    w2_lane_setup(a, t)
    a.i(f"s_cmp_ge_u32 s{S_SLOT}, {0 if os.environ.get('K2_NOFFN') else 28}")
    a.i("s_cbranch_scc1 L2_wo_prep")
    a.i(f"s_mul_i32 s{S_T+4}, s{S_SLOT}, 37")
    a.i(f"s_lshr_b32 s{S_T+4}, s{S_T+4}, 8")
    a.i(f"s_mul_i32 s{S_T+5}, s{S_T+4}, 7")
    a.i(f"s_sub_u32 s{S_T+5}, s{S_SLOT}, s{S_T+5}")
    a.i(f"s_lshl_b32 s{S_T+9}, s{S_T+5}, 7")
    a.i(f"s_lshl_b32 s{S_T+6}, s{S_XCD}, 2")
    a.i(f"s_add_u32 s{S_T+4}, s{S_T+4}, s{S_T+6}")
    a.i(f"s_lshl_b32 s{S_T+4}, s{S_T+4}, 1")
    a.i(f"s_lshl_b32 s{S_T+5}, s{S_T+5}, 1")
    a.i(f"s_lshr_b32 s{S_T+6}, s{S_WL}, 1")
    a.i(f"s_add_u32 s{S_T+6}, s{S_T+6}, s{S_T+4}")
    a.i(f"s_and_b32 s{S_T+7}, s{S_WL}, 1")
    a.i(f"s_add_u32 s{S_T+7}, s{S_T+7}, s{S_T+5}")
    a.i(f"s_mul_i32 s{S_T+8}, s{S_WL}, {28*1024}")
    a.i(f"s_mul_i32 s{S_H0}, s{S_T+4}, {112*1024}")
    a.i(f"s_add_u32 s{S_H0}, s{S_H0}, s{S_T+8}")
    a.i(f"s_add_u32 s{S_H0}, s{S_H0}, {HF}")
    a.i(f"s_add_u32 s{S_H1}, s{S_H0}, {112*1024}")
    srd(a, SW2, 28, 1792*896)
    a.i(f"s_mul_i32 s{S_WO}, s{S_WL}, {448*896}")
    a.i(f"s_add_u32 s{S_WO}, s{S_WO}, s{S_T+9}")
    a.i(f"v_mov_b32 v{VA}, v{VL16}")
    if int(os.environ.get('K2_FDELAY', '6')): a.i(f"s_sleep {int(os.environ.get('K2_FDELAY', '6'))}")
    for k in range(7): ffn_issue(a, k)
    srd(a, SX, 16, 2048*896)
    srd(a, SB2, 30, 896)
    a.i(f"v_and_b32 v{t}, 31, v0")
    a.i(f"v_mul_u32_u24 v{t}, 896, v{t}")
    a.i(f"v_bfe_u32 v{t+1}, v0, 5, 1")
    a.i(f"v_lshlrev_b32 v{t+1}, 3, v{t+1}")
    a.i(f"v_add_u32 v{t}, v{t}, v{t+1}")
    a.i(f"s_mul_i32 s{S_T+8}, s{S_T+6}, {32*896}")
    a.i(f"s_lshl_b32 s{S_T+9}, s{S_T+7}, 6")
    a.i(f"s_add_u32 s{S_T+8}, s{S_T+8}, s{S_T+9}")
    for r in range(AF, AF+64): a.i(f"v_mov_b32 v{r}, 0")
    a.i("s_waitcnt vmcnt(24)")
    ffn_trreads(a, 0)
    nout = 24
    for k in range(28):
        last = min(k + 6, 27)
        extra = 8 if k > 21 else 0
        if k + 1 <= 27:
            a.i(f"s_waitcnt vmcnt({4*(last - (k+1)) + extra})")
            ffn_trreads(a, k + 1)
            a.i("s_waitcnt lgkmcnt(4)")
        else:
            a.i("s_waitcnt lgkmcnt(0)")
        b = HB + 8*(k % 7); w = WFB[k & 1]
        for ti in range(2):
            for ci in range(2):
                d = AF + 16*(ti*2+ci)
                a.i(mf(d, w+4*ci, b+4*ti, d))
        if k + 7 <= 27: ffn_issue(a, k + 7)
        if k == 21:
            for g in range(4):
                a.i(f"buffer_load_dwordx2 v[{XR+2*g}:{XR+2*g+1}], v{t}, s[{SX}:{SX+3}], s{S_T+8} offen offset:{16*g}")
            for g in range(4):
                a.i(f"buffer_load_dwordx2 v[{BR+2*g}:{BR+2*g+1}], v{t+1}, s[{SB2}:{SB2+3}], s{S_T+9} offen offset:{16*g}")
    stamp(a, 8, SWS, dbg, tmp_v=252)
    a.i(f"v_add_u32 v{t+2}, s{S_M0}, v{VL16}")
    a.i("s_nop 7")
    a.i("s_nop 3")
    for tile in range(4):
        for g in range(4):
            a.i(f"ds_write_b128 v{t+2}, v[{AF+16*tile+4*g}:{AF+16*tile+4*g+3}] offset:{tile*4096+g*1024}")
    a.i("s_waitcnt vmcnt(0) lgkmcnt(0)")
    a.i("s_barrier")
    a.i(f"s_lshl_b32 s{S_T+8}, s{S_WL}, 12")
    a.i(f"s_add_u32 s{S_T+8}, s{S_T+8}, {RB}")
    a.i(f"v_add_u32 v{t+2}, s{S_T+8}, v{VL16}")
    for src in range(4):
        for g in range(4):
            a.i(f"ds_read_b128 v[{AF+16*src+4*g}:{AF+16*src+4*g+3}], v{t+2} offset:{src*16384+g*1024}")
        if src == 2: a.i("s_waitcnt lgkmcnt(0)")
    a.i("s_waitcnt lgkmcnt(0)")
    for r in range(16):
        a.i(f"v_add_f32 v{AF+r}, v{AF+r}, v{AF+16+r}")
        a.i(f"v_add_f32 v{AF+32+r}, v{AF+32+r}, v{AF+48+r}")
    for r in range(16):
        a.i(f"v_add_f32 v{AF+r}, v{AF+r}, v{AF+32+r}")
    for src in (XR, BR):
        for k in range(8):
            a.i(f"v_lshlrev_b32 v{t+3}, 16, v{src+k}")
            a.i(f"v_and_b32 v{t+4}, 0xffff0000, v{src+k}")
            a.i(f"v_add_f32 v{AF+2*k}, v{AF+2*k}, v{t+3}")
            a.i(f"v_add_f32 v{AF+2*k+1}, v{AF+2*k+1}, v{t+4}")
    a.i(f"s_mul_i32 s{S_T+8}, s{S_T+6}, 14")
    a.i(f"s_add_u32 s{S_T+8}, s{S_T+8}, s{S_T+7}")
    a.i(f"s_lshl_b32 s{S_T+8}, s{S_T+8}, 12")
    a.i(f"s_add_u32 s{S_T+8}, s{S_T+8}, {FF}")
    for g in range(4):
        a.i(f"buffer_store_dwordx4 v[{AF+4*g}:{AF+4*g+3}], v{VL16}, s[{SWS}:{SWS+3}], s{S_T+8} offen offset:{1024*g} sc1")
    stamp(a, 9, SWS, dbg, tmp_v=252)
    a.i("s_endpgm")
    a.label("L2_wo_prep")
    wo_prep(a, t)
    a.label("L2_ffn_none")
    a.i("s_barrier")
    a.i("s_endpgm")

WOB = 168
OB = 72

def ffn_fused(a, dbg):
    t = 248
    a.i(f"s_lshl_b32 s{S_M0}, s{S_WL}, 14")
    a.i(f"s_add_u32 s{S_M0}, s{S_M0}, {RB}")
    w2_lane_setup(a, t)
    a.i(f"s_cmp_ge_u32 s{S_SLOT}, 28")
    a.i("s_cbranch_scc1 L2_ffn_none")
    a.i(f"s_mul_i32 s{S_T+4}, s{S_SLOT}, 37")
    a.i(f"s_lshr_b32 s{S_T+4}, s{S_T+4}, 8")
    a.i(f"s_mul_i32 s{S_T+5}, s{S_T+4}, 7")
    a.i(f"s_sub_u32 s{S_T+5}, s{S_SLOT}, s{S_T+5}")
    a.i(f"s_lshl_b32 s{S_T+3}, s{S_T+5}, 7")
    a.i(f"s_lshl_b32 s{S_T+6}, s{S_XCD}, 2")
    a.i(f"s_add_u32 s{S_T+4}, s{S_T+4}, s{S_T+6}")
    a.i(f"s_lshl_b32 s{S_T+4}, s{S_T+4}, 1")
    a.i(f"s_lshl_b32 s{S_T+5}, s{S_T+5}, 1")
    a.i(f"s_lshr_b32 s{S_T+6}, s{S_WL}, 1")
    a.i(f"s_add_u32 s{S_T+6}, s{S_T+6}, s{S_T+4}")
    a.i(f"s_and_b32 s{S_T+7}, s{S_WL}, 1")
    a.i(f"s_add_u32 s{S_T+7}, s{S_T+7}, s{S_T+5}")
    a.i(f"s_mul_i32 s{S_T+8}, s{S_WL}, {28*1024}")
    a.i(f"s_mul_i32 s{S_H0}, s{S_T+4}, {112*1024}")
    a.i(f"s_add_u32 s{S_H0}, s{S_H0}, s{S_T+8}")
    a.i(f"s_add_u32 s{S_H0}, s{S_H0}, {HF}")
    a.i(f"s_add_u32 s{S_H1}, s{S_H0}, {112*1024}")
    srd(a, SW2, 28, 1792*896)
    a.i(f"s_mul_i32 s{S_WO}, s{S_WL}, {448*896}")
    a.i(f"s_add_u32 s{S_WO}, s{S_WO}, s{S_T+3}")
    a.i(f"v_mov_b32 v{VA}, v{VL16}")
    vm = []
    def wait_for(names):
        last = max(k for k, n in enumerate(vm) if n in names)
        a.i(f"s_waitcnt vmcnt({len(vm) - 1 - last})")
    def w2dma(k):
        a.i(f"s_add_u32 m0, s{S_M0}, {2048*(k % 7)}")
        a.i("s_nop 0")
        a.i(f"buffer_load_dwordx4 v{VW1}, s[{SW2}:{SW2+3}], s{S_WO} offen lds")
        a.i(f"buffer_load_dwordx4 v{VW2}, s[{SW2}:{SW2+3}], s{S_WO} offen offset:1024 lds")
        a.i(f"s_add_u32 s{S_WO}, s{S_WO}, {16*896}")
        vm.extend([f"W{k}"]*2)
    def hload(k):
        b = HB + 8*(k % 7)
        a.i(f"buffer_load_dwordx4 v[{b}:{b+3}], v{VA}, s[{SWS}:{SWS+3}], s{S_H0} offen sc1")
        a.i(f"buffer_load_dwordx4 v[{b+4}:{b+7}], v{VA}, s[{SWS}:{SWS+3}], s{S_H1} offen sc1")
        a.i(f"v_add_u32 v{VA}, 1024, v{VA}")
        vm.extend([f"H{k}"]*2)
    for k in range(7): w2dma(k)
    a.i("s_waitcnt vmcnt(0)")
    vm.clear()
    for r in range(AF, AF+64): a.i(f"v_mov_b32 v{r}, 0")
    a.i(f"s_cmp_lg_u32 s{S_WL}, 0")
    a.i("s_cbranch_scc1 L2_ffn_follow")
    a.i(f"v_lshrrev_b32 v{t}, 2, v{VL16}")
    a.i(f"v_and_b32 v{t}, 60, v{t}")
    a.i(f"s_lshr_b32 s{S_T+8}, s{S_T+4}, 2")
    a.i(f"s_lshl_b32 s{S_T+8}, s{S_T+8}, 8")
    a.i(f"s_add_u32 s{S_T+8}, s{S_T+8}, {FH_OFF}")
    a.i(f"v_add_u32 v{t}, s{S_T+8}, v{t}")
    poll_flags(a, t, t+1, SWS, S_T+8)
    lds_signal(a, 8, t)
    a.i("s_branch L2_ffn_go")
    a.label("L2_ffn_follow")
    lds_wait(a, 8, t, S_T+8)
    a.label("L2_ffn_go")
    stamp(a, 14, SWS, dbg, tmp_v=252)
    for k in range(7): hload(k)
    srd(a, SX, 16, 2048*896)
    srd(a, SB2, 30, 896)
    a.i(f"v_and_b32 v{t}, 31, v0")
    a.i(f"v_mul_u32_u24 v{t}, 896, v{t}")
    a.i(f"v_bfe_u32 v{t+1}, v0, 5, 1")
    a.i(f"v_lshlrev_b32 v{t+1}, 3, v{t+1}")
    a.i(f"v_add_u32 v{t}, v{t}, v{t+1}")
    a.i(f"s_mul_i32 s{S_T+8}, s{S_T+6}, {32*896}")
    a.i(f"s_lshl_b32 s{S_T+9}, s{S_T+7}, 6")
    a.i(f"s_add_u32 s{S_T+8}, s{S_T+8}, s{S_T+9}")
    ffn_trreads(a, 0)
    for k in range(28):
        if k + 1 <= 27:
            names = [f"H{k}"] + ([f"W{k+1}"] if f"W{k+1}" in vm else [])
            wait_for(names)
            ffn_trreads(a, k + 1)
            a.i("s_waitcnt lgkmcnt(4)")
        else:
            wait_for([f"H{k}"])
            a.i("s_waitcnt lgkmcnt(0)")
        b = HB + 8*(k % 7); w = WFB[k & 1]
        for ti in range(2):
            for ci in range(2):
                d = AF + 16*(ti*2+ci)
                a.i(mf(d, w+4*ci, b+4*ti, d))
        if k + 7 <= 27:
            hload(k + 7); w2dma(k + 7)
        if k == 21:
            for g in range(4):
                a.i(f"buffer_load_dwordx2 v[{XR+2*g}:{XR+2*g+1}], v{t}, s[{SX}:{SX+3}], s{S_T+8} offen offset:{16*g}")
            for g in range(4):
                a.i(f"buffer_load_dwordx2 v[{BR+2*g}:{BR+2*g+1}], v{t+1}, s[{SB2}:{SB2+3}], s{S_T+9} offen offset:{16*g}")
            vm.extend(["xb"]*8)
    stamp(a, 8, SWS, dbg, tmp_v=252)
    srd(a, SW2, 20, 448*896)
    a.i(f"s_mul_i32 s{S_WO}, s{S_WL}, {4*28*896}")
    a.i(f"s_add_u32 s{S_WO}, s{S_WO}, s{S_T+3}")
    for i in range(8):
        a.i(f"s_add_u32 m0, s{S_M0}, {2048*i}")
        a.i("s_nop 0")
        a.i(f"buffer_load_dwordx4 v{VW1}, s[{SW2}:{SW2+3}], s{S_WO} offen lds")
        a.i(f"buffer_load_dwordx4 v{VW2}, s[{SW2}:{SW2+3}], s{S_WO} offen offset:1024 lds")
        a.i(f"s_add_u32 s{S_WO}, s{S_WO}, {16*896 if (i & 1) == 0 else 12*896}")
    a.i("s_waitcnt vmcnt(0)")
    a.i(f"v_mov_b32 v{t+4}, 0")
    for i in range(8):
        w = WOB + 8*i
        for ci, va in enumerate((VT0, VT1)):
            a.i(f"ds_read_b64_tr_b16 v[{w+4*ci}:{w+4*ci+1}], v{va} offset:{2048*i}")
            a.i(f"ds_read_b64_tr_b16 v[{w+4*ci+2}:{w+4*ci+3}], v{va} offset:{2048*i+1024}")
        if i in (2, 5): a.i("s_waitcnt lgkmcnt(0)")
    a.i("s_waitcnt lgkmcnt(0)")
    for i in range(1, 8, 2):
        w = WOB + 8*i
        for ci in range(2):
            a.i(f"v_cndmask_b32 v{w+4*ci+2}, v{w+4*ci+2}, v{t+4}, s[{S_HI}:{S_HI+1}]")
            a.i(f"v_cndmask_b32 v{w+4*ci+3}, v{w+4*ci+3}, v{t+4}, s[{S_HI}:{S_HI+1}]")
    stamp(a, 9, SWS, dbg, tmp_v=252)
    a.i("s_barrier")
    a.i(f"s_cmp_lg_u32 s{S_WL}, 0")
    a.i("s_cbranch_scc1 L2_o_follow")
    a.i(f"v_lshrrev_b32 v{t+2}, 2, v{VL16}")
    a.i(f"v_and_b32 v{t+2}, 60, v{t+2}")
    a.i(f"s_lshr_b32 s{S_T}, s{S_T+4}, 2")
    a.i(f"s_lshl_b32 s{S_T}, s{S_T}, 8")
    a.i(f"s_add_u32 s{S_T}, s{S_T}, {FO_OFF}")
    a.i(f"v_add_u32 v{t+2}, s{S_T}, v{t+2}")
    poll_flags(a, t+2, t+3, SWS, S_T)
    lds_signal(a, 16, t+2)
    a.i("s_branch L2_o_go")
    a.label("L2_o_follow")
    lds_wait(a, 16, t+2, S_T)
    a.label("L2_o_go")
    stamp(a, 10, SWS, dbg, tmp_v=252)
    a.i(f"s_lshl_b32 s{S_T}, s{S_T+4}, 15")
    a.i(f"s_lshl_b32 s{S_T+1}, s{S_WL}, 13")
    a.i(f"s_add_u32 s{S_T}, s{S_T}, s{S_T+1}")
    a.i(f"s_add_u32 s{S_T}, s{S_T}, {OF}")
    a.i(f"s_add_u32 s{S_T+1}, s{S_T}, 32768")
    a.i(f"v_add_u32 v{t+2}, 4096, v{VL16}")
    for i in range(8):
        for ti in range(2):
            vo = VL16 if i < 4 else t+2
            a.i(f"buffer_load_dwordx4 v[{OB+8*i+4*ti}:{OB+8*i+4*ti+3}], v{vo}, s[{SWS}:{SWS+3}], s{S_T+ti} offen offset:{(i&3)*1024} sc1")
    for i in range(8):
        a.i(f"s_waitcnt vmcnt({2*(7-i)})")
        for ti in range(2):
            for ci in range(2):
                d = AF + 16*(ti*2+ci)
                a.i(mf(d, WOB+8*i+4*ci, OB+8*i+4*ti, d))
    a.i(f"v_add_u32 v{t+2}, s{S_M0}, v{VL16}")
    a.i("s_nop 7")
    for tile in range(4):
        if tile == 3: a.i("s_nop 3")
        for g in range(4):
            a.i(f"ds_write_b128 v{t+2}, v[{AF+16*tile+4*g}:{AF+16*tile+4*g+3}] offset:{tile*4096+g*1024}")
    a.i("s_waitcnt lgkmcnt(0)")
    a.i("s_barrier")
    a.i(f"s_lshl_b32 s{S_T}, s{S_WL}, 12")
    a.i(f"s_add_u32 s{S_T}, s{S_T}, {RB}")
    a.i(f"v_add_u32 v{t+2}, s{S_T}, v{VL16}")
    for src in range(4):
        for g in range(4):
            a.i(f"ds_read_b128 v[{AF+16*src+4*g}:{AF+16*src+4*g+3}], v{t+2} offset:{src*16384+g*1024}")
        if src == 2: a.i("s_waitcnt lgkmcnt(0)")
    a.i(f"v_and_b32 v{t+3}, 31, v0")
    a.i(f"v_mul_u32_u24 v{t+3}, 896, v{t+3}")
    a.i(f"v_bfe_u32 v{t+4}, v0, 5, 1")
    a.i(f"v_lshlrev_b32 v{t+4}, 4, v{t+4}")
    a.i(f"v_add_u32 v{t+3}, v{t+3}, v{t+4}")
    a.i(f"s_mul_i32 s{S_T}, s{S_T+6}, {32*896}")
    a.i(f"s_lshl_b32 s{S_T+1}, s{S_T+7}, 6")
    a.i(f"s_add_u32 s{S_T}, s{S_T}, s{S_T+1}")
    srd(a, SK, S_OUT, 2048*896)
    a.i("s_waitcnt lgkmcnt(0)")
    for r in range(16):
        a.i(f"v_add_f32 v{AF+r}, v{AF+r}, v{AF+16+r}")
        a.i(f"v_add_f32 v{AF+32+r}, v{AF+32+r}, v{AF+48+r}")
    for r in range(16):
        a.i(f"v_add_f32 v{AF+r}, v{AF+r}, v{AF+32+r}")
    for src in (XR, BR):
        for k in range(8):
            a.i(f"v_lshlrev_b32 v{t+4}, 16, v{src+k}")
            a.i(f"v_and_b32 v{t+5}, 0xffff0000, v{src+k}")
            a.i(f"v_add_f32 v{AF+2*k}, v{AF+2*k}, v{t+4}")
            a.i(f"v_add_f32 v{AF+2*k+1}, v{AF+2*k+1}, v{t+5}")
    PK = OB
    for p in range(8):
        a.i(f"v_cvt_pk_bf16_f32 v{PK+p}, v{AF+2*p}, v{AF+2*p+1}")
    a.i("s_nop 1")
    for g in (0, 2):
        a.i(f"v_permlane32_swap_b32 v{PK+2*g}, v{PK+2*g+2}")
        a.i(f"v_permlane32_swap_b32 v{PK+2*g+1}, v{PK+2*g+3}")
    a.i(f"buffer_store_dwordx4 v[{PK}:{PK+3}], v{t+3}, s[{SK}:{SK+3}], s{S_T} offen")
    a.i(f"buffer_store_dwordx4 v[{PK+4}:{PK+7}], v{t+3}, s[{SK}:{SK+3}], s{S_T} offen offset:32")
    stamp(a, 11, SWS, dbg, tmp_v=252)
    a.i("s_endpgm")
    a.label("L2_ffn_none")
    a.i("s_barrier")
    a.i("s_endpgm")

def decode2(a):
    a.i(f"s_and_b32 s{S_XCD}, s2, 7")
    a.i(f"s_lshr_b32 s{S_SLOT}, s2, 3")
    a.i(f"s_lshr_b32 s3, s{S_SLOT}, 4")
    a.i(f"s_lshl_b32 s{S_H}, s{S_XCD}, 1")
    a.i(f"s_add_u32 s{S_H}, s{S_H}, s3")
    a.i(f"s_and_b32 s{S_QB}, s{S_SLOT}, 15")
    a.i(f"v_and_b32 v{VL16}, 63, v0")
    a.i(f"v_lshlrev_b32 v{VL16}, 4, v{VL16}")
    a.i(f"s_mov_b32 s{S_HI}, 0")
    a.i(f"s_mov_b32 s{S_HI+1}, -1")

def k2_fused(a, dbg):
    FUSED[0] = True
    a.label("L2_attn_entry")
    decode2(a)
    a.i(f"v_mov_b32 v2, {LSY + 128}")
    a.i(f"s_mov_b32 s70, {SPIN_MAX*4}")
    a.label("L2_tagw")
    a.i("ds_read_b32 v3, v2")
    a.i("s_waitcnt lgkmcnt(0)")
    a.i(f"v_readfirstlane_b32 s{S_TAG}, v3")
    a.i("s_nop 3")
    a.i(f"s_cmp_lg_u32 s{S_TAG}, 0")
    a.i("s_cbranch_scc1 L2_tagx")
    a.i("s_sub_u32 s70, s70, 1")
    a.i("s_cmp_lg_u32 s70, 0")
    a.i("s_cbranch_scc1 L2_tagw")
    a.label("L2_tagx")
    attention(a, dbg)
    a.label("L2_ffn_entry")
    decode2(a)
    ffn_fused(a, dbg)
    a.label("L_CODE_END")

def k2(dbg=False):
    a = Asm()
    name = "k2_kernel"
    header(a, name)
    a.i("s_cmp_ge_u32 s2, 256")
    a.i("s_cbranch_scc1 L2_end")
    a.i("s_load_dwordx16 s[16:31], s[0:1], 0")
    a.i("s_load_dwordx2 s[32:33], s[0:1], 80")
    a.i(f"s_and_b32 s{S_XCD}, s2, 7")
    a.i(f"s_lshr_b32 s{S_SLOT}, s2, 3")
    a.i(f"s_lshr_b32 s3, s{S_SLOT}, 4")
    a.i(f"s_lshl_b32 s{S_H}, s{S_XCD}, 1")
    a.i(f"s_add_u32 s{S_H}, s{S_H}, s3")
    a.i(f"s_and_b32 s{S_QB}, s{S_SLOT}, 15")
    a.i("v_lshrrev_b32 v2, 6, v0")
    a.i(f"v_and_b32 v{VL16}, 63, v0")
    a.i(f"v_readfirstlane_b32 s{S_W}, v2")
    a.i(f"v_lshlrev_b32 v{VL16}, 4, v{VL16}")
    a.i(f"s_mov_b32 s{S_HI}, 0")
    a.i(f"s_mov_b32 s{S_HI+1}, -1")
    a.i(f"s_and_b32 s{S_WL}, s{S_W}, 3")
    a.i("s_waitcnt lgkmcnt(0)")
    srd(a, SWS, 32, WS_SRD)
    stamp(a, 4, SWS, dbg, tmp_v=252)
    a.i(f"s_cmp_ge_u32 s{S_W}, 4")
    a.i("s_cbranch_scc1 L2_ffn")
    attention(a, dbg)
    a.label("L2_ffn")
    ffn(a, dbg)
    a.label("L2_end")
    a.i("s_endpgm")
    footer(a, name, 256)
    return a

if __name__ == "__main__":
    a = k2()
    open("k2.s", "w").write('.amdgcn_target "amdgcn-amd-amdhsa--gfx950"\n' + a.text())
    errs = check(a.lines, "k2")
    print("\n".join(errs[:40])); print(len(errs), "hazard findings")
```

```python
import sys
from common import *
import k1, k2, k3
def build(path, dbg=False):
    hdr_src = open("cdna_kernels/" + NAME + ".s.ref").read().split("\n")
    hdr = [l for l in hdr_src if l.startswith(";") and "@launch" not in l and "Override" not in l and "grid=" not in l]
    out = "\n".join(hdr) + "\n"
    out += f"; @launch kernel=k1_kernel grid=(256,1,1) block=(512,1,1) lds={k1.LDS1}\n"
    out += f"; @launch kernel=k2_kernel grid=(256,1,1) block=(512,1,1) lds={k2.LDS2}\n"
    out += f"; @launch kernel=k3_kernel grid=(224,1,1) block=(256,1,1) lds={k3.LDS3}\n"
    out += '.amdgcn_target "amdgcn-amd-amdhsa--gfx950"\n'
    nerr = 0
    for m in (k1.k1, k2.k2, k3.k3):
        a = m(dbg)
        errs = check_all(a.lines, m.__name__)
        for e in errs[:20]: print(e)
        nerr += len(errs)
        out += a.text()
    open(path, "w").write(out)
    return nerr
def build_fused(path, dbg=False):
    hdr_src = open("cdna_kernels/" + NAME + ".s.ref").read().split("\n")
    hdr = [l for l in hdr_src if l.startswith(";") and "@launch" not in l and "Override" not in l and "grid=" not in l]
    out = "\n".join(hdr) + "\n"
    out += f"; @launch grid=(256,1,1) block=(512,1,1) lds=163840\n"
    out += '.amdgcn_target "amdgcn-amd-amdhsa--gfx950"\n'
    k1.FUSED[0] = True
    a = k1.k1(dbg)
    k2.k2_fused(a, dbg)
    footer(a, k1.KNAME, 256)
    errs = check_all(a.lines, "fused")
    for e in errs[:20]: print(e)
    out += a.text()
    open(path, "w").write(out)
    return len(errs)

if __name__ == "__main__":
    dbg = "--dbg" in sys.argv
    path = [x for x in sys.argv[1:] if not x.startswith("--")]
    path = path[0] if path else "cdna_kernels/" + NAME + ".s"
    n = build_fused(path, dbg) if '--fused' in sys.argv else build(path, dbg)
    print("hazard findings:", n, "->", path)
```

```python
from common import *
import os

XS   = 16384
WB   = 114688
LDS1 = 163840
XRDY = 32
STA  = 48
STC  = 64
XA   = 80
STT  = 96
XIS  = 112
RDN  = 132
STATS = 147456 + 12288
STG  = WB + 4*8192

ACC = 16
WF  = [80, 84, 88, 92]
XF  = [96, 112, 128, 144]
PK  = 128
TA  = 160
XAD = 161
VW  = 165
VLANE16 = 250
VFL = 168
VU  = 176
VB  = 192
VBR = 208
CR  = 216
HX  = [16, 20, 24, 28]
HN  = [32, 36]
HSB = [40, 56]
VOX = 72
HAD = 76
HAD2 = 80
VSUM, VSQ = 84, 85
VR, VNM = 86, 87
VPQ, VPF = 88, 89
VDUM = 8

S_RT, S_CG, S_KIND, S_W = 34, 35, 36, 37
SX, SWC, SWS, SM = 40, 44, 48, 52
S_SOX, S_SO, S_M0, S_C, S_FT0, S_NF, S_RS16 = 56, 57, 58, 59, 60, 61, 62
S_TILE, S_RND, S_SH, S_TADJ, S_XD = 63, 64, 65, 66, 67
S_XW, S_XN = 70, 71
S_KIND0, S_TILE0 = 68, 69
S_ONES = 73
S_TMP = 76
S_ROLE = 87
S_MASK = 92
NCC = int(os.environ.get('K1_NCC', '3'))
DBG = [False]
FUSED = [False]
KNAME = NAME + '_kernel'

def mf(acc, A, B, C=None):
    c = acc if C is None else C
    return f"v_mfma_f32_32x32x16_bf16 v[{acc}:{acc+15}], v[{A}:{A+3}], v[{B}:{B+3}], v[{c}:{c+15}]"

def norm(src, dst):
    N = []
    for d in range(4):
        N.append(f"v_lshlrev_b32 v{VU+2*d}, 16, v{src+d}")
        N.append(f"v_and_b32 v{VU+2*d+1}, s{S_MASK}, v{src+d}")
    for d in range(8):
        N.append(f"v_fma_f32 v{VU+d}, v{VU+d}, v{VR}, v{VNM}")
    for d in range(4):
        N.append(f"v_cvt_pk_bf16_f32 v{dst+d}, v{VU+2*d}, v{VU+2*d+1}")
    return N

def xaddr_setup(a, dst, t, rowtile_sreg=None):
    a.i(f"v_lshrrev_b32 v{t+1}, 5, v{t}")
    a.i(f"v_and_b32 v{t+2}, 31, v{t}")
    a.i(f"v_bfe_u32 v{t+3}, v{t+2}, 1, 3")
    a.i(f"v_lshlrev_b32 v{t+4}, 7, v{t+2}")
    if rowtile_sreg is not None:
        a.i(f"s_lshl_b32 s12, s{rowtile_sreg}, 12")
        a.i(f"v_add_u32 v{t+4}, s12, v{t+4}")
    for k in range(4):
        a.i(f"v_add_u32 v{t+5}, {2*k}, v{t+1}")
        a.i(f"v_xor_b32 v{t+5}, v{t+5}, v{t+3}")
        a.i(f"v_lshlrev_b32 v{t+5}, 4, v{t+5}")
        a.i(f"v_add_u32 v{dst+k}, v{t+4}, v{t+5}")

_rp = [0]
def dma_params(a, rnd):
    t = VU
    _rp[0] += 1; u = _rp[0]
    if rnd == 0:
        a.i(f"s_cmp_eq_u32 s{S_W}, 3")
        a.i(f"s_cbranch_scc1 L1_p{u}_f")
        a.i(f"s_mul_i32 s{S_TILE}, s{S_CG}, 3")
        a.i(f"s_add_u32 s{S_TILE}, s{S_TILE}, s{S_W}")
        a.i(f"s_cmp_ge_u32 s{S_TILE}, 32")
        a.i(f"s_cselect_b32 s{S_KIND}, 2, 1")
        srd(a, SWC, 18, 448*2688)
        a.i(f"s_mul_i32 s12, s{S_TILE}, 56")
        a.i(f"s_and_b32 s{S_SH}, s12, 15")
        a.i(f"s_sub_u32 s{S_SO}, s12, s{S_SH}")
        a.i(f"s_movk_i32 s13, 2688")
        a.i(f"s_branch L1_p{u}_go")
        a.label(f"L1_p{u}_f")
        a.i(f"s_mov_b32 s{S_TILE}, s{S_FT0}")
        a.i(f"s_mov_b32 s{S_SH}, 0")
    else:
        a.i(f"s_add_u32 s{S_TILE}, s{S_FT0}, s{S_W}")
        a.i(f"s_add_u32 s{S_TILE}, s{S_TILE}, 1")
    a.i(f"s_mov_b32 s{S_KIND}, 0")
    srd(a, SWC, 24, 448*3584)
    a.i(f"s_lshl_b32 s{S_SO}, s{S_TILE}, 6")
    a.i(f"s_movk_i32 s13, 3584")
    if rnd == 1:
        a.i(f"s_add_u32 s12, s{S_W}, 1")
        a.i(f"s_cmp_ge_u32 s12, s{S_NF}")
        a.i(f"s_cselect_b32 s{S_KIND}, 3, s{S_KIND}")
        a.i(f"s_cselect_b32 s{SWC+2}, 0, s{SWC+2}")
    a.label(f"L1_p{u}_go")
    a.i(f"s_lshl_b32 s{S_RS16}, s13, 4")
    a.i(f"v_lshrrev_b32 v{t}, 6, v{VLANE16}")
    a.i(f"v_mul_lo_u32 v{t}, v{t}, s13")
    a.i(f"v_and_b32 v{t+1}, 48, v{VLANE16}")
    a.i(f"v_add_u32 v{VW}, v{t}, v{t+1}")

def wdma(slot_imm):
    return [f"s_add_u32 m0, s{S_M0}, {slot_imm}",
            f"s_nop 0",
            f"buffer_load_dwordx4 v{VW}, s[{SWC}:{SWC+3}], s{S_SO} offen lds",
            f"s_add_u32 s{S_SO}, s{S_SO}, s{S_RS16}"]

PRE = [None]; PRE2 = [None]; HPOLL = [None]
OOL = []
def xspin(a, tag):
    b = Asm()
    b.label(f"L1_{tag}_xslow")
    b.i(f"s_mov_b32 s{S_TMP+2}, {SPIN_MAX*4}")
    b.label(f"L1_{tag}_xsp")
    b.i(f"ds_read_b128 v[{VFL}:{VFL+3}], v{VFL+4}")
    b.i("s_waitcnt lgkmcnt(0)")
    b.i(f"v_min_u32 v{VFL}, v{VFL}, v{VFL+1}")
    b.i(f"v_min3_u32 v{VFL}, v{VFL}, v{VFL+2}, v{VFL+3}")
    b.i("s_nop 0")
    b.i(f"v_readfirstlane_b32 s{S_TMP}, v{VFL}")
    b.i("s_nop 3")
    b.i(f"s_cmp_ge_u32 s{S_TMP}, s{S_TMP+1}")
    b.i(f"s_cbranch_scc1 L1_{tag}_xok")
    b.i(f"s_sub_u32 s{S_TMP+2}, s{S_TMP+2}, 1")
    b.i(f"s_cmp_lg_u32 s{S_TMP+2}, 0")
    b.i(f"s_cbranch_scc1 L1_{tag}_xsp")
    b.i(f"s_branch L1_{tag}_xok")
    OOL.append(b)

def step(a, tag, k, transposed, check, cinit=None):
    M = [(mf(ACC+16*i, WF[k], XF[k]+4*i, cinit) if transposed else mf(ACC+16*i, XF[k]+4*i, WF[k], cinit)) for i in range(4)]
    k2 = (k + 2) & 3
    lg = 7 if (k == 1 and check) else 6
    a.i(f"s_waitcnt vmcnt(5) lgkmcnt({lg})")
    if k == 0 and check:
        a.i(f"ds_read_b128 v[{VFL}:{VFL+3}], v{VFL+4}")
    slot = k2 * 1024
    Rw = [f"ds_read_b64_tr_b16 v[{WF[k2]}:{WF[k2]+1}], v{TA} offset:{slot}",
          f"ds_read_b64_tr_b16 v[{WF[k2]+2}:{WF[k2]+3}], v{TA} offset:{slot+256}"]
    Rx = [f"ds_read_b128 v[{XF[k2]+4*i}:{XF[k2]+4*i+3}], v{XAD+k2} offset:{4096*i}" for i in range(4)]
    D = wdma(k*1024)
    seq = [[Rw[0], Rx[0]], [Rw[1], Rx[1]], [Rx[2]] + D[:2], [Rx[3]] + D[2:]]
    if k == 1:
        seq[3] += [f"v_xor_b32 v{TA}, 4096, v{TA}", f"v_subrev_u32 v{TA}, s{S_TADJ}, v{TA}"]
        seq[3] += [f"v_add_u32 v{XAD+kk}, s{S_XD}, v{XAD+kk}" for kk in (0, 1)]
    if k == 2:
        seq[3] += [f"v_add_u32 v{XAD+kk}, s{S_XD}, v{XAD+kk}" for kk in (2, 3)]
    if k == 3:
        seq[1] += [f"s_xor_b32 s{S_M0+0}, s{S_M0}, 4096"] if False else []
    a.i(M[0])
    if k == 2 and check:
        a.i(f"v_min_u32 v{VFL}, v{VFL}, v{VFL+1}")
        a.i(f"v_min3_u32 v{VFL}, v{VFL}, v{VFL+2}, v{VFL+3}")
        a.i(f"s_add_u32 s{S_TMP+1}, s{S_C}, 2")
        a.i(f"v_readfirstlane_b32 s{S_TMP}, v{VFL}")
        a.i(f"s_min_u32 s{S_TMP+1}, s{S_TMP+1}, 7")
        a.i(f"s_cmp_lt_u32 s{S_C}, {NCC-1}")
        a.i(f"s_cselect_b32 s{S_TMP+1}, 0, s{S_TMP+1}")
        a.i(f"s_cmp_lt_u32 s{S_TMP}, s{S_TMP+1}")
        a.i(f"s_cbranch_scc1 L1_{tag}_xslow")
        a.label(f"L1_{tag}_xok")
        xspin(a, tag)
    for x in seq[0]: a.i(x)
    for i in range(1, 4):
        a.i(M[i])
        for x in seq[i]: a.i(x)

def chunk_end(a, tag, rnd):
    if os.environ.get('K1_FINE'): stamp_dyn(a, S_C, 16 if rnd == 0 else 24, SWS, DBG[0], tmp_v=12)
    a.i(f"s_xor_b32 s{S_M0}, s{S_M0}, 4096")
    a.i(f"s_add_u32 s{S_C}, s{S_C}, 1")
    if rnd == 1:
        a.i(f"s_cmp_ge_u32 s{S_C}, 5")
        a.i(f"s_cselect_b32 s{SWC+2}, 0, s{SWC+2}")
        if FUSED[0]:
            a.i(f"s_cmp_eq_u32 s{S_C}, 5")
            a.i(f"s_cbranch_scc1 L1_{tag}_rdn")
            a.label(f"L1_{tag}_ce")
            b = Asm()
            b.label(f"L1_{tag}_rdn")
            lds_flag(b, RDN, 1, VU+8)
            b.i(f"s_branch L1_{tag}_ce")
            OOL.append(b)
        return
    a.i(f"s_cmp_eq_u32 s{S_C}, 6")
    a.i(f"s_cselect_b32 s{S_TADJ}, s{S_SH}, 0")
    a.i(f"s_cselect_b32 s{S_XD}, s{S_XW}, s{S_XN}")
    a.i(f"s_cmp_eq_u32 s{S_C}, 5")
    a.i(f"s_cbranch_scc1 L1_{tag}_sw")
    a.label(f"L1_{tag}_ce")
    b = Asm()
    b.label(f"L1_{tag}_sw")
    b.i(f"s_mov_b32 s{S_TMP+4}, s{S_SH}")
    dma_params(b, 1)
    b.i(f"s_mov_b32 s{S_SH}, s{S_TMP+4}")
    b.i(f"s_branch L1_{tag}_ce")
    OOL.append(b)

def gemm_loop(a, tag, transposed, rnd=0):
    a.label(f"L1_{tag}_loop")
    for k in range(4): step(a, tag, k, transposed, rnd == 0)
    chunk_end(a, tag, rnd)
    a.i(f"s_cmp_lt_u32 s{S_C}, 7")
    a.i(f"s_cbranch_scc1 L1_{tag}_loop")

def lds_flag(a, word_off_sreg_base, val, t):
    a.i(f"s_lshl_b32 s12, s{S_W}, 2")
    a.i(f"s_add_u32 s12, s12, {LSY + word_off_sreg_base}")
    a.i(f"v_mov_b32 v{t}, s12")
    a.i(f"v_mov_b32 v{t+1}, {val}")
    a.i(f"ds_write_b32 v{t}, v{t+1}")

_sp = [0]
def lds_spin(a, base, val, t):
    _sp[0] += 1; u = _sp[0]
    a.i(f"s_lshl_b32 s12, s{S_W}, 2")
    a.i(f"s_add_u32 s12, s12, {LSY + base}")
    a.i(f"v_mov_b32 v{t}, s12")
    a.i(f"s_mov_b32 s13, {SPIN_MAX*4}")
    a.label(f"L1_ls{u}")
    a.i(f"ds_read_b32 v{t+1}, v{t}")
    a.i("s_waitcnt lgkmcnt(0)")
    a.i(f"v_readfirstlane_b32 s12, v{t+1}")
    a.i("s_nop 3")
    a.i(f"s_cmp_ge_u32 s12, {val}")
    a.i(f"s_cbranch_scc1 L1_ls{u}x")
    a.i("s_sleep 1")
    a.i(f"s_sub_u32 s13, s13, 1")
    a.i(f"s_cmp_lg_u32 s13, 0")
    a.i(f"s_cbranch_scc1 L1_ls{u}")
    a.label(f"L1_ls{u}x")

def stage_pair(a, i0_, vaddr):
    for i in (i0_, i0_+1):
        pk = PK + 8*i
        a.i(f"ds_write_b128 v{vaddr}, v[{pk}:{pk+3}] offset:{(i & 1)*2048}")
        a.i(f"ds_write_b128 v{vaddr}, v[{pk+4}:{pk+7}] offset:{(i & 1)*2048 + 1024}")

def epi_qkv(a, isv):
    t = VU
    u = "v" if isv else "q"
    a.i(f"s_lshl_b32 s12, s{S_W}, 12")
    a.i(f"s_add_u32 s12, s12, {STG}")
    a.i(f"v_add_u32 v{t+6}, s12, v{VLANE16}")
    if not isv:
        a.i(f"s_mov_b32 s{S_TMP+9}, {f2u(QSCALE):#x}")
        a.i(f"s_cmp_ge_u32 s{S_TILE0}, 16")
        a.i(f"s_cselect_b32 s{S_TMP+5}, 1.0, s{S_TMP+9}")
        a.i(f"s_cselect_b32 s{S_TMP+8}, {ONES:#x}, 0")
        a.i(f"s_mov_b32 s{S_TMP+6}, 0")
        a.i(f"s_mov_b32 s{S_TMP+7}, -1")
        a.i(f"v_mov_b32 v{t}, s{S_TMP+5}")
        a.i(f"v_mov_b32 v{t+2}, s{S_TMP+8}")
        a.i(f"v_lshrrev_b32 v{t+3}, 16, v{t+2}")
        a.i("s_nop 4")
    else:
        a.i(f"v_and_b32 v{t}, 31, v0")
        a.i(f"v_cmp_le_u32 s[{S_TMP+6}:{S_TMP+7}], 28, v{t}")
        a.i(f"v_cmp_eq_u32 vcc, 28, v{t}")
        a.i(f"v_mov_b32 v{t+1}, 0")
        a.i(f"v_mov_b32 v{t+2}, {ONES:#x}")
        a.i(f"v_cndmask_b32 v{t+1}, v{t+1}, v{t+2}, vcc")
        a.i("s_nop 7")
    for i in range(4):
        acc = ACC + 16*i; pk = PK + 8*i
        if not isv:
            for p in range(8):
                a.i(f"v_pk_mul_f32 v[{acc+2*p}:{acc+2*p+1}], v[{acc+2*p}:{acc+2*p+1}], v[{t}:{t+1}] op_sel_hi:[1,0]")
            for p in range(8):
                a.i(f"v_cvt_pk_bf16_f32 v{pk+p}, v{acc+2*p}, v{acc+2*p+1}")
            a.i(f"v_cndmask_b32 v{pk+6}, v{pk+6}, v{t+2}, s[{S_TMP+6}:{S_TMP+7}]")
            a.i(f"v_cndmask_b32 v{pk+7}, v{pk+7}, v{t+3}, s[{S_TMP+6}:{S_TMP+7}]")
        else:
            for p in range(8):
                a.i(f"v_cvt_pk_bf16_f32 v{pk+p}, v{acc+2*p}, v{acc+2*p+1}")
            for p in range(8):
                a.i(f"v_cndmask_b32 v{pk+p}, v{pk+p}, v{t+1}, s[{S_TMP+6}:{S_TMP+7}]")
        if i == 1:
            stage_pair(a, 0, t+6)
        if i == 2:
            a.i("s_waitcnt lgkmcnt(0)")
            lds_flag(a, STA, 1, t+8)
    lds_spin(a, STC, 1, t+8)
    stage_pair(a, 2, t+6)
    a.i("s_waitcnt lgkmcnt(0)")
    lds_flag(a, STA, 2, t+8)

def epi_f(a):
    t = -2
    a.i(f"s_lshl_b32 s12, s{S_W}, 13")
    a.i(f"s_add_u32 s12, s12, {WB}")
    a.i(f"v_add_u32 v{t+6}, s12, v{VLANE16}")
    a.i("s_nop 7")
    for i in range(4):
        acc = ACC + 16*i; pk = PK + 8*i
        for r in range(16): a.i(f"v_max_f32 v{acc+r}, 0, v{acc+r}")
        for p in range(8):
            a.i(f"v_pk_mul_f32 v[{acc+2*p}:{acc+2*p+1}], v[{acc+2*p}:{acc+2*p+1}], v[{acc+2*p}:{acc+2*p+1}]")
        for p in range(8):
            a.i(f"v_cvt_pk_bf16_f32 v{pk+p}, v{acc+2*p}, v{acc+2*p+1}")
        a.i(f"ds_write_b128 v{t+6}, v[{pk}:{pk+3}] offset:{i*2048}")
        a.i(f"ds_write_b128 v{t+6}, v[{pk+4}:{pk+7}] offset:{i*2048+1024}")
    a.i("s_waitcnt lgkmcnt(0)")
    lds_flag(a, STA, 3, t+8)

def bias_load(a):
    t = VU
    srd(a, SM, 26, 3584)
    a.i(f"s_lshl_b32 s12, s{S_TMP+5}, 6")
    a.i(f"v_bfe_u32 v{t}, v0, 5, 1")
    a.i(f"v_lshlrev_b32 v{t}, 3, v{t}")
    for g in range(4):
        a.i(f"buffer_load_dwordx2 v[{VBR+2*g}:{VBR+2*g+1}], v{t}, s[{SM}:{SM+3}], s12 offen offset:{16*g}")

def bias_unpack(a):
    for k in range(8):
        a.i(f"v_lshlrev_b32 v{VB+2*k}, 16, v{VBR+k}")
        a.i(f"v_and_b32 v{VB+2*k+1}, s{S_MASK}, v{VBR+k}")

def qkv_flag(a):
    a.i(f"s_lshl_b32 s13, s{S_CG}, 8")
    a.i(f"s_lshl_b32 s14, s{S_RT}, 2")
    a.i(f"s_add_u32 s13, s13, s14")
    a.i(f"s_add_u32 s13, s13, {FLG + FQ_OFF}")
    last_arriver_flag(a, 0, 3, 13, 2, SWS, 12)

def compute(a, dbg):
    t = VU
    if FUSED[0] and not os.environ.get('NO_CODEPF'):
        a.i(f"s_cmp_lg_u32 s{S_W}, 3")
        a.i("s_cbranch_scc1 L1_nopf")
        a.i("s_lshr_b32 s6, s2, 3")
        a.i(f"s_cmp_ge_u32 s6, (L_CODE_END - {KNAME}) / 1024")
        a.i("s_cbranch_scc1 L1_nopf")
        a.i("s_getpc_b64 s[4:5]")
        a.label("L1_pc")
        a.i(f"s_sub_u32 s4, s4, L1_pc - {KNAME}")
        a.i("s_subb_u32 s5, s5, 0")
        a.i("s_lshl_b32 s6, s6, 10")
        a.i("s_add_u32 s4, s4, s6")
        a.i("s_addc_u32 s5, s5, 0")
        a.i(f"global_load_dwordx4 v[{VDUM}:{VDUM+3}], v{VLANE16}, s[4:5]")
        a.label("L1_nopf")
    a.i(f"v_and_b32 v{t+8}, 63, v0")
    dma_params(a, 0)
    a.i(f"s_mov_b32 s{S_KIND0}, s{S_KIND}")
    a.i(f"s_mov_b32 s{S_TILE0}, s{S_TILE}")
    a.i(f"s_lshl_b32 s{S_M0}, s{S_W}, 13")
    a.i(f"s_add_u32 s{S_M0}, s{S_M0}, {WB}")
    a.i(f"s_add_u32 s{S_TMP+5}, s{S_FT0}, s{S_W}")
    a.i(f"s_add_u32 s{S_TMP+5}, s{S_TMP+5}, 1")
    a.i(f"s_cmp_eq_u32 s{S_W}, 3")
    a.i(f"s_cselect_b32 s{S_TMP+5}, s{S_FT0}, s{S_TMP+5}")
    NW0 = int(os.environ.get('K1_NW0', '3'))
    bias_load(a)
    for s_ in range(NW0):
        for x in wdma(1024*s_): a.i(x)
    lds_spin(a, XIS, 1, t+10)
    for s_ in range(NW0, 8):
        for x in wdma(1024*s_): a.i(x)
    l = t+8
    a.i(f"v_lshrrev_b32 v{t+1}, 5, v{l}")
    a.i(f"v_lshlrev_b32 v{t+1}, 3, v{t+1}")
    a.i(f"v_bfe_u32 v{t+2}, v{l}, 2, 2")
    a.i(f"v_add_u32 v{t+1}, v{t+1}, v{t+2}")
    a.i(f"v_lshlrev_b32 v{t+1}, 6, v{t+1}")
    a.i(f"v_bfe_u32 v{t+2}, v{l}, 4, 1")
    a.i(f"v_lshlrev_b32 v{t+2}, 5, v{t+2}")
    a.i(f"v_add_u32 v{t+1}, v{t+1}, v{t+2}")
    a.i(f"v_and_b32 v{t+2}, 3, v{l}")
    a.i(f"v_lshlrev_b32 v{t+2}, 3, v{t+2}")
    a.i(f"v_add_u32 v{t+1}, v{t+1}, v{t+2}")
    a.i(f"s_add_u32 s12, s{S_M0}, s{S_SH}")
    a.i(f"v_add_u32 v{TA}, s12, v{t+1}")
    xaddr_setup(a, XAD, l)
    a.i(f"v_mov_b32 v{VFL+4}, {LSY + XRDY}")
    a.i(f"s_mov_b32 s{S_C}, 0")
    a.i(f"s_mov_b32 s{S_RND}, 0")
    a.i(f"s_mov_b32 s{S_TADJ}, 0")
    a.i(f"s_mov_b32 s{S_XD}, {XS}")
    a.i(f"s_mov_b32 s{S_XN}, {XS}")
    a.i(f"s_mov_b32 s{S_XW}, {(-6*XS) & 0xffffffff}")
    for r in range(64): a.i(f"v_mov_b32 v{ACC+r}, 0")
    lds_spin(a, STT, 1, t+10)
    a.i(f"s_lshl_b32 s12, s{S_W}, 9")
    a.i(f"s_add_u32 s12, s12, {STATS}")
    a.i(f"v_lshrrev_b32 v{t+10}, 1, v{VLANE16}")
    a.i(f"v_add_u32 v{t+10}, s12, v{t+10}")
    a.i(f"ds_read_b64 v[{CR}:{CR+1}], v{t+10}")
    a.i(f"s_lshl_b32 s12, s{S_W}, 12")
    for k in range(4): a.i(f"v_add_u32 v{t+12+k}, s12, v{XAD+k}")
    for c in range(NCC):
        for k in range(4):
            a.i(f"ds_read_b128 v[{XF[c]+4*k}:{XF[c]+4*k+3}], v{t+12+k} offset:{c*XS}")
    gv = (VR, VNM)
    globals()['VR'], globals()['VNM'] = CR, CR+1
    a.i("s_waitcnt lgkmcnt(0)")
    for c in range(NCC):
        for k in range(4):
            for x in norm(XF[c]+4*k, XF[3]+4*(k & 1)): a.i(x)
            a.i(f"ds_write_b128 v{t+12+k}, v[{XF[3]+4*(k & 1)}:{XF[3]+4*(k & 1)+3}] offset:{c*XS}")
    globals()['VR'], globals()['VNM'] = gv
    a.i("s_waitcnt lgkmcnt(0)")
    lds_flag(a, XA, 2, t+10)
    a.i(f"v_mov_b32 v{t+10}, {LSY + XA}")
    a.i(f"s_mov_b32 s{S_TMP+2}, {SPIN_MAX*4}")
    a.label("L1_x0")
    a.i(f"ds_read_b128 v[{VFL}:{VFL+3}], v{t+10}")
    a.i("s_waitcnt lgkmcnt(0)")
    a.i(f"v_min_u32 v{VFL}, v{VFL}, v{VFL+1}")
    a.i(f"v_min3_u32 v{VFL}, v{VFL}, v{VFL+2}, v{VFL+3}")
    a.i("s_nop 0")
    a.i(f"v_readfirstlane_b32 s{S_TMP}, v{VFL}")
    a.i("s_nop 3")
    a.i(f"s_cmp_ge_u32 s{S_TMP}, 2")
    a.i("s_cbranch_scc1 L1_x0x")
    a.i(f"s_sub_u32 s{S_TMP+2}, s{S_TMP+2}, 1")
    a.i(f"s_cmp_lg_u32 s{S_TMP+2}, 0")
    a.i("s_cbranch_scc1 L1_x0")
    a.label("L1_x0x")
    a.i("s_waitcnt vmcnt(6)")
    bias_unpack(a)
    a.i(f"s_cmp_eq_u32 s{S_W}, 3")
    a.i("s_cbranch_scc0 L1_init_d")
    for r in range(64): a.i(f"v_mov_b32 v{ACC+r}, v{VB+(r & 15)}")
    a.label("L1_init_d")
    stamp(a, 13, SWS, dbg, tmp_v=12)
    for k in range(2):
        for i in range(4): a.i(f"ds_read_b128 v[{XF[k]+4*i}:{XF[k]+4*i+3}], v{XAD+k} offset:{4096*i}")
        a.i(f"ds_read_b64_tr_b16 v[{WF[k]}:{WF[k]+1}], v{TA} offset:{1024*k}")
        a.i(f"ds_read_b64_tr_b16 v[{WF[k]+2}:{WF[k]+3}], v{TA} offset:{1024*k+256}")
    a.i("s_waitcnt lgkmcnt(0)")
    a.i(f"s_cmp_eq_u32 s{S_KIND0}, 2")
    a.i("s_cbranch_scc1 L1_goN")
    gemm_loop(a, "T0", True)
    stamp(a, 2, SWS, dbg, tmp_v=12)
    a.i(f"s_cmp_eq_u32 s{S_KIND0}, 0")
    a.i("s_cbranch_scc1 L1_epiF")
    epi_qkv(a, False)
    a.i("s_branch L1_r1")
    a.label("L1_goN")
    gemm_loop(a, "N0", False)
    stamp(a, 2, SWS, dbg, tmp_v=12)
    epi_qkv(a, True)
    a.label("L1_r1")
    a.i(f"s_cmp_eq_u32 s{S_KIND}, 3")
    a.i("s_cbranch_scc1 L1_idle")
    a.i(f"s_mov_b32 s{S_TILE0}, s{S_TILE}")
    a.i(f"s_mov_b32 s{S_C}, 0")
    a.i(f"s_mov_b32 s{S_TADJ}, 0")
    a.i(f"s_mov_b32 s{S_XD}, {XS}")
    for k in range(4): step(a, "P0", k, True, False, cinit=(VB if k == 0 else None))
    chunk_end(a, "P0", 1)
    gemm_loop(a, "T1", True, 1)
    stamp(a, 15, SWS, dbg, tmp_v=12)
    a.label("L1_epiF")
    a.i("s_waitcnt vmcnt(0) lgkmcnt(0)")
    a.i(f"s_cmp_eq_u32 s{S_W}, 3")
    a.i("s_cbranch_scc1 L1_epiF3")
    if FUSED[0]: PRE[0](a, dbg)
    epi_f(a)
    a.i("s_branch L1_done")
    a.label("L1_epiF3")
    epi_f(a)
    a.i("s_branch L1_late")
    a.label("L1_idle")
    a.i("s_waitcnt vmcnt(0) lgkmcnt(0)")
    lds_flag(a, STA, 4, VU+8)
    a.label("L1_late")
    if FUSED[0]:
        PRE2[0](a, dbg)
    a.label("L1_done")
    a.i("s_waitcnt lgkmcnt(0)")
    a.i("s_barrier")
    stamp(a, 3, SWS, dbg, tmp_v=12)
    if FUSED[0]: a.i("s_branch L2_attn_entry")
    else: a.i("s_endpgm")
    for b in OOL: a.lines += b.lines
    OOL.clear()

def helper(a, dbg):
    global VU
    t = 96
    save = VU
    VU = 112
    a.i(f"v_and_b32 v{t}, 63, v0")
    a.i(f"s_lshr_b32 s12, s2, 5")
    a.i(f"s_lshl_b32 s12, s12, 4")
    a.i(f"s_lshl_b32 s13, s{S_W}, 2")
    a.i(f"s_add_u32 s12, s12, s13")
    a.i(f"s_lshl_b32 s13, s{S_RT}, 7")
    a.i(f"s_add_u32 s12, s12, s13")
    a.i(f"s_mul_i32 s12, s12, 896")
    for i in range(4):
        a.i(f"buffer_load_dwordx4 v[{VDUM}:{VDUM+3}], v{VLANE16}, s[{SX}:{SX+3}], s12 offen offset:{min(1024*i, 2560)}")
    a.i(f"v_lshrrev_b32 v{t+1}, 3, v{t}")
    a.i(f"v_lshrrev_b32 v{t+2}, 4, v{t}")
    a.i(f"v_and_b32 v{t+3}, 7, v{t}")
    a.i(f"v_mul_u32_u24 v{t+5}, 896, v{t+1}")
    for i in range(4):
        a.i(f"v_xor_b32 v{t+4}, v{t+3}, v{t+2}")
        if i & 1: a.i(f"v_xor_b32 v{t+4}, 4, v{t+4}")
        a.i(f"v_lshlrev_b32 v{t+4}, 4, v{t+4}")
        a.i(f"v_add_u32 v{t+4}, v{t+4}, v{t+5}")
        a.i(f"v_add_u32 v{VOX+i}, {8*i*896 - 1024*i}, v{t+4}")
    a.i(f"s_lshl_b32 s12, s{S_RT}, 7")
    a.i(f"s_lshl_b32 s13, s{S_W}, 5")
    a.i(f"s_add_u32 s12, s12, s13")
    a.i(f"s_mul_i32 s{S_SOX}, s12, 896")
    vm = ["xs"]*4
    def xdma(c):
        a.i(f"s_add_u32 m0, s13, {c*XS}")
        if c: a.i(f"s_add_u32 s{S_SOX}, s{S_SOX}, 128")
        else: a.i("s_nop 0")
        for i in range(4):
            a.i(f"buffer_load_dwordx4 v{VOX+i}, s[{SX}:{SX+3}], s{S_SOX} offen offset:{1024*i} lds")
            vm.append(f"x{c}")
    def wait_for(name):
        last = max(k for k, n in enumerate(vm) if n == name)
        a.i(f"s_waitcnt vmcnt({len(vm) - 1 - last})")
    a.i(f"s_lshl_b32 s13, s{S_W}, 12")
    for c in range(4): xdma(c)
    xaddr_setup(a, HAD, t, S_W)
    a.i(f"s_lshl_b32 s13, s{S_W}, 12")
    for k in range(4): a.i(f"v_add_u32 v{HAD2+k}, 65536, v{HAD+k}")
    a.i(f"v_mov_b32 v{VSUM}, 0")
    a.i(f"v_mov_b32 v{VSQ}, 0")
    a.i(f"v_lshrrev_b32 v{t+1}, 5, v{t}")
    a.i(f"v_lshlrev_b32 v{t+1}, 5, v{t+1}")
    a.i(f"v_bfe_u32 v{t+2}, v{t}, 4, 1")
    a.i(f"v_add_u32 v{t+1}, v{t+1}, v{t+2}")
    a.i(f"v_and_b32 v{t+2}, 15, v{t}")
    a.i(f"v_lshlrev_b32 v{t+2}, 4, v{t+2}")
    a.i(f"v_mul_u32_u24 v{VPQ}, 2688, v{t+1}")
    a.i(f"v_add_u32 v{VPQ}, v{VPQ}, v{t+2}")
    a.i(f"v_mul_u32_u24 v{VPF}, 3584, v{t+1}")
    a.i(f"v_add_u32 v{VPF}, v{VPF}, v{t+2}")
    srd(a, SWC, 18, 448*2688)
    srd(a, SM, 24, 448*3584)
    a.i(f"s_and_b32 s12, s{S_RT}, 3")
    a.i(f"s_lshl_b32 s12, s12, 2")
    a.i(f"s_add_u32 s12, s12, s{S_W}")
    a.i(f"s_lshl_b32 s12, s12, 1")
    a.i(f"s_add_u32 s14, s12, 128")
    a.i(f"s_mul_i32 s{S_TMP}, s14, 2688")
    a.i(f"s_mul_i32 s14, s{S_CG}, 168")
    a.i(f"s_and_b32 s14, s14, -16")
    a.i(f"s_add_u32 s{S_TMP}, s{S_TMP}, s14")
    a.i(f"s_mul_i32 s{S_TMP+1}, s12, 3584")
    a.i(f"s_lshl_b32 s14, s{S_FT0}, 6")
    a.i(f"s_add_u32 s{S_TMP+1}, s{S_TMP+1}, s14")
    RAW = 128
    def rd(c):
        b = RAW + 16*c; lo = c*XS
        for k in range(4):
            if lo < 65536: a.i(f"ds_read_b128 v[{b+4*k}:{b+4*k+3}], v{HAD+k} offset:{lo}")
            else:          a.i(f"ds_read_b128 v[{b+4*k}:{b+4*k+3}], v{HAD2+k} offset:{lo-65536}")
    def dots(c):
        b = RAW + 16*c
        for d in range(16):
            a.i(f"v_dot2c_f32_bf16 v{VSUM}, s{S_ONES}, v{b+d}")
            a.i(f"v_dot2c_f32_bf16 v{VSQ}, v{b+d}, v{b+d}")
    wait_for("x0")
    rd(0)
    for c in range(7):
        if c + 4 <= 6: xdma(c + 4)
        if c == 2:
            stamp(a, 12, SWS, dbg, tmp_v=12)
            lds_flag(a, XIS, 1, t+8)
        if c < 6:
            wait_for(f"x{c+1}")
            rd(c+1)
            a.i("s_waitcnt lgkmcnt(4)")
        else:
            a.i("s_waitcnt lgkmcnt(0)")
        dots(c)
    stamp(a, 1, SWS, dbg, tmp_v=12)
    a.i("s_nop 2")
    a.i(f"v_mov_b32 v{VU}, v{VSUM}")
    a.i(f"v_mov_b32 v{VU+1}, v{VSQ}")
    a.i("s_nop 1")
    a.i(f"v_permlane32_swap_b32 v{VSUM}, v{VU}")
    a.i(f"v_permlane32_swap_b32 v{VSQ}, v{VU+1}")
    a.i("s_nop 1")
    a.i(f"v_add_f32 v{VSUM}, v{VSUM}, v{VU}")
    a.i(f"v_add_f32 v{VSQ}, v{VSQ}, v{VU+1}")
    a.i(f"v_mul_f32 v{VSUM}, {f2u(1.0/448):#x}, v{VSUM}")
    a.i(f"v_mul_f32 v{VSQ}, {f2u(1.0/448):#x}, v{VSQ}")
    a.i(f"v_fma_f32 v{VSQ}, -v{VSUM}, v{VSUM}, v{VSQ}")
    a.i(f"v_max_f32 v{VSQ}, 0, v{VSQ}")
    a.i(f"v_add_f32 v{VSQ}, {f2u(1e-5):#x}, v{VSQ}")
    a.i(f"v_rsq_f32 v{VR}, v{VSQ}")
    a.i(f"s_lshl_b32 s12, s{S_W}, 2")
    a.i(f"s_add_u32 s12, s12, {LSY + XRDY}")
    a.i(f"v_mov_b32 v{t+8}, s12")
    a.i(f"v_mul_f32 v{VNM}, v{VSUM}, v{VR}")
    a.i(f"v_sub_f32 v{VNM}, 0, v{VNM}")
    a.i(f"s_lshl_b32 s12, s{S_W}, 9")
    a.i(f"s_add_u32 s12, s12, {STATS}")
    a.i(f"v_lshrrev_b32 v{t+2}, 1, v{VLANE16}")
    a.i(f"v_add_u32 v{t+2}, s12, v{t+2}")
    a.i(f"ds_write_b64 v{t+2}, v[{VR}:{VR+1}]")
    a.i("s_waitcnt lgkmcnt(0)")
    lds_flag(a, STT, 1, t+4)
    if FUSED[0]:
        a.i(f"s_mov_b32 s80, s{S_DBG}")
        a.i(f"s_mov_b32 s81, s{S_DBG+1}")
        a.i(f"s_mov_b32 s82, 256")
        a.i(f"s_mov_b32 s83, 0x20000")
        a.i(f"v_mov_b32 v{t+11}, 0")
        a.i(f"buffer_load_dword v{t+10}, v{t+11}, s[80:83], 0 offen sc1")
    for p in range(5):
        a.i(f"buffer_load_dwordx4 v[{VDUM}:{VDUM+3}], v{VPQ}, s[{SWC}:{SWC+3}], s{S_TMP} offen")
        a.i(f"s_add_u32 s{S_TMP}, s{S_TMP}, {64*2688}")
    for c in range(NCC, 7):
        for k in range(4):
            src = RAW + 16*c + 4*k
            for x in norm(src, HN[k & 1]): a.i(x)
            lo = c*XS
            if lo < 65536: a.i(f"ds_write_b128 v{HAD+k}, v[{HN[k & 1]}:{HN[k & 1]+3}] offset:{lo}")
            else:          a.i(f"ds_write_b128 v{HAD2+k}, v[{HN[k & 1]}:{HN[k & 1]+3}] offset:{lo-65536}")
        a.i(f"v_mov_b32 v{t+9}, {c+1}")
        for _ in range({2: 2, 3: 2, 4: 2 if NCC > 2 else 1, 5: 2 if NCC > 2 else 1, 6: 1}[c] if NCC >= 3 else (2 if c in (2, 3) else 1)):
            a.i(f"buffer_load_dwordx4 v[{VDUM}:{VDUM+3}], v{VPF}, s[{SM}:{SM+3}], s{S_TMP+1} offen")
            a.i(f"s_add_u32 s{S_TMP+1}, s{S_TMP+1}, {64*3584}")
        a.i("s_waitcnt lgkmcnt(0)")
        a.i(f"ds_write_b32 v{t+8}, v{t+9}")
    stamp(a, 14, SWS, dbg and not FUSED[0], tmp_v=12)
    if FUSED[0]:
        a.i("s_waitcnt vmcnt(12)")
        a.i(f"v_readfirstlane_b32 s{S_TAG}, v{t+10}")
        a.i("s_nop 3")
        a.i(f"s_cmp_lg_u32 s{S_TAG}, 0")
        a.i("s_cbranch_scc1 L1_htag")
        get_tag(a, 2, 80)
        a.label("L1_htag")
    ST = 40
    a.i(f"s_cmp_eq_u32 s{S_W}, 3")
    a.i("s_cbranch_scc1 L1_hs_h")
    a.i(f"s_mul_i32 s{S_TMP+2}, s{S_CG}, 3")
    a.i(f"s_add_u32 s{S_TMP+2}, s{S_TMP+2}, s{S_W}")
    a.i(f"s_lshl_b32 s{S_TMP+2}, s{S_TMP+2}, 17")
    a.i(f"s_lshl_b32 s{S_TMP+3}, s{S_RT}, 13")
    a.i(f"s_add_u32 s{S_TMP+2}, s{S_TMP+2}, s{S_TMP+3}")
    a.i(f"s_lshl_b32 s12, s{S_W}, 12")
    a.i(f"s_add_u32 s12, s12, {STG}")
    a.i(f"v_add_u32 v{t+2}, s12, v{VLANE16}")
    for ph in range(2):
        lds_spin(a, STA, ph+1, t+4)
        for j in range(4):
            a.i(f"ds_read_b128 v[{ST+16*ph+4*j}:{ST+16*ph+4*j+3}], v{t+2} offset:{1024*j}")
        a.i("s_waitcnt lgkmcnt(0)")
        if ph == 0: lds_flag(a, STC, 1, t+4)
        for j in range(4):
            a.i(f"buffer_store_dwordx4 v[{ST+16*ph+4*j}:{ST+16*ph+4*j+3}], v{VLANE16}, s[{SWS}:{SWS+3}], s{S_TMP+2} offen offset:{1024*j} sc1")
        a.i(f"s_add_u32 s{S_TMP+2}, s{S_TMP+2}, 4096")
    a.i("s_waitcnt vmcnt(0)")
    stamp(a, 15, SWS, dbg and False, tmp_v=12)
    if FUSED[0]:
        qkv_flag(a)
        a.i(f"s_cmp_lg_u32 s{S_W}, 0")
        a.i("s_cbranch_scc1 L1_hs_h")
        lds_spin(a, RDN, 1, t+4)
        HPOLL[0](a)
    a.label("L1_hs_h")
    a.i(f"s_cmp_lt_u32 s2, 196")
    a.i(f"s_cselect_b32 s{SM}, s28, s20")
    a.i(f"s_cselect_b32 s{SM+1}, s29, s21")
    a.i(f"s_cselect_b32 s12, 0, 196")
    a.i(f"s_mov_b32 s{SM+2}, {448*896}")
    a.i(f"s_cselect_b32 s{SM+2}, {1792*896}, s{SM+2}")
    a.i(f"s_mov_b32 s{SM+3}, 0x20000")
    a.i(f"s_sub_u32 s12, s2, s12")
    a.i(f"s_cmp_ge_u32 s2, 245")
    a.i(f"s_cselect_b32 s12, 0, s12")
    a.i(f"s_cselect_b32 s{SM+2}, 0, s{SM+2}")
    a.i(f"s_lshl_b32 s12, s12, 13")
    a.i(f"s_lshl_b32 s13, s{S_W}, 11")
    a.i(f"s_add_u32 s12, s12, s13")
    a.i(f"buffer_load_dwordx4 v[{VDUM}:{VDUM+3}], v{VLANE16}, s[{SM}:{SM+3}], s12 offen")
    a.i(f"buffer_load_dwordx4 v[{VDUM}:{VDUM+3}], v{VLANE16}, s[{SM}:{SM+3}], s12 offen offset:1024")
    lds_spin(a, STA, 3, t+4)
    a.i(f"s_mov_b32 s{S_TMP+5}, s12")
    a.i(f"s_lshl_b32 s12, s{S_W}, 13")
    a.i(f"s_add_u32 s12, s12, {WB}")
    a.i(f"v_add_u32 v{t+2}, s12, v{VLANE16}")
    for j in range(8):
        a.i(f"ds_read_b128 v[{ST+4*j}:{ST+4*j+3}], v{t+2} offset:{1024*j}")
    a.i("s_waitcnt lgkmcnt(0)")
    a.i(f"s_cmp_eq_u32 s{S_TMP+5}, 3")
    a.i("s_cbranch_scc0 L1_hs_done")
    a.i(f"s_add_u32 s{S_TMP+3}, s{S_FT0}, s{S_W}")
    a.i(f"s_add_u32 s{S_TMP+3}, s{S_TMP+3}, 1")
    a.i(f"s_cmp_eq_u32 s{S_W}, 3")
    a.i(f"s_cselect_b32 s{S_TMP+3}, s{S_FT0}, s{S_TMP+3}")
    a.i(f"s_lshl_b32 s{S_TMP+3}, s{S_TMP+3}, 11")
    a.i(f"s_mul_i32 s{S_TMP+2}, s{S_RT}, {4*112*1024}")
    a.i(f"s_add_u32 s{S_TMP+2}, s{S_TMP+2}, s{S_TMP+3}")
    a.i(f"s_add_u32 s{S_TMP+2}, s{S_TMP+2}, {HF}")
    for i in range(4):
        a.i(f"buffer_store_dwordx4 v[{ST+8*i}:{ST+8*i+3}], v{VLANE16}, s[{SWS}:{SWS+3}], s{S_TMP+2} offen sc1")
        a.i(f"buffer_store_dwordx4 v[{ST+8*i+4}:{ST+8*i+7}], v{VLANE16}, s[{SWS}:{SWS+3}], s{S_TMP+2} offen offset:1024 sc1")
        a.i(f"s_add_u32 s{S_TMP+2}, s{S_TMP+2}, {112*1024}")
    a.label("L1_hs_done")
    a.i("s_barrier")
    if FUSED[0]:
        a.i(f"s_lshl_b32 s13, s{S_RT}, 8")
        a.i(f"s_lshl_b32 s14, s{S_CG}, 2")
        a.i(f"s_add_u32 s13, s13, s14")
        a.i(f"s_add_u32 s{S_TMP+6}, s13, {FLG + FH_OFF}")
        a.i("s_waitcnt vmcnt(0)")
        last_arriver_flag(a, 20, 4, S_TMP+6, 2, SWS, 12)
        a.i("s_branch L2_ffn_entry")
    else:
        a.i("s_endpgm")
    VU = save

def k1(dbg=False, a=None):
    a = a or Asm()
    DBG[0] = dbg
    name = "k1_kernel" if not FUSED[0] else KNAME
    header(a, name)
    a.i("s_cmp_ge_u32 s2, 256")
    a.i("s_cbranch_scc1 L1_end")
    a.i("s_load_dwordx16 s[16:31], s[0:1], 0")
    a.i("s_load_dwordx2 s[32:33], s[0:1], 80")
    if FUSED[0]:
        a.i(f"s_load_dwordx4 s[{S_OUT}:{S_OUT+3}], s[0:1], 64")
        a.i("s_memrealtime s[94:95]")
    a.i("s_and_b32 s3, s2, 7")
    a.i("s_lshr_b32 s4, s2, 3")
    a.i("s_and_b32 s5, s3, 3")
    a.i("s_lshl_b32 s5, s5, 2")
    a.i("s_and_b32 s6, s4, 3")
    a.i(f"s_add_u32 s{S_RT}, s5, s6")
    a.i("s_lshr_b32 s6, s3, 2")
    a.i("s_lshl_b32 s6, s6, 3")
    a.i("s_lshr_b32 s7, s4, 2")
    a.i(f"s_add_u32 s{S_CG}, s6, s7")
    a.i(f"v_lshrrev_b32 v1, 6, v0")
    a.i(f"v_and_b32 v2, 63, v0")
    a.i(f"v_readfirstlane_b32 s{S_W}, v1")
    a.i(f"v_lshlrev_b32 v{VLANE16}, 4, v2")
    a.i(f"s_mov_b32 s{S_ONES}, {ONES:#x}")
    a.i(f"s_lshr_b32 s{S_ROLE}, s{S_W}, 2")
    a.i(f"s_and_b32 s{S_W}, s{S_W}, 3")
    a.i(f"s_mov_b32 s{S_MASK}, 0xffff0000")
    a.i(f"s_lshr_b32 s10, s{S_CG}, 1")
    a.i(f"s_mul_i32 s10, s10, 7")
    a.i(f"s_and_b32 s11, s{S_CG}, 1")
    a.i(f"s_sub_u32 s{S_NF}, 4, s11")
    a.i(f"s_lshl_b32 s11, s11, 2")
    a.i(f"s_add_u32 s{S_FT0}, s10, s11")
    a.i(f"v_lshlrev_b32 v2, 2, v2")
    a.i(f"v_add_u32 v2, {LSY}, v2")
    a.i(f"v_mov_b32 v3, 0")
    a.i(f"ds_write_b32 v2, v3")
    a.i("s_waitcnt lgkmcnt(0)")
    srd(a, SX, 16, 2048*896)
    srd(a, SWS, 32, WS_SRD)
    if FUSED[0]:
        a.i(f"s_or_b32 s{S_TAG}, s94, 1")
        a.i(f"s_or_b32 s12, s2, s{S_W}")
        a.i(f"s_or_b32 s12, s12, s{S_ROLE}")
        a.i(f"s_cmp_lg_u32 s12, 0")
        a.i("s_cbranch_scc1 L1_notag")
        a.i(f"s_mov_b32 s{SM}, s{S_DBG}")
        a.i(f"s_mov_b32 s{SM+1}, s{S_DBG+1}")
        a.i(f"s_mov_b32 s{SM+2}, 256")
        a.i(f"s_mov_b32 s{SM+3}, 0x20000")
        a.i(f"v_mov_b32 v2, s{S_TAG}")
        a.i(f"v_mov_b32 v3, 0")
        a.i("s_mov_b64 exec, 1")
        a.i(f"buffer_store_dword v2, v3, s[{SM}:{SM+3}], 0 offen sc0 sc1")
        a.i("s_mov_b64 exec, -1")
        a.label("L1_notag")
    a.i("s_barrier")
    a.i(f"s_cmp_lg_u32 s{S_ROLE}, 0")
    a.i("s_cbranch_scc1 L1_helper")
    stamp(a, 0, SWS, dbg, tmp_v=12)
    compute(a, dbg)
    a.label("L1_end")
    a.i("s_endpgm")
    a.label("L1_helper")
    helper(a, dbg)
    if not FUSED[0]: footer(a, name, 256)
    return a

if __name__ == "__main__":
    a = k1()
    open("k1.s", "w").write('.amdgcn_target "amdgcn-amd-amdhsa--gfx950"\n' + a.text())
    errs = check_all(a.lines, "k1")
    print("\n".join(errs[:40])); print(len(errs), "hazard findings")
```

```python
from common import *

import os
BIAS = float(os.environ.get('K2_BIAS', '96'))
NOEXP = os.environ.get('K2_NOEXP'); NOMF = os.environ.get('K2_NOMFMA')
LDS2 = 131072
RB = 65536
O = 16; Q = 80; K = 112; S = [144, 160]; P = 176; V = 184
KT = 216; T2 = 224; T3 = O + 48
VL16 = 1
S_H, S_QB, S_W, S_WL, S_XCD, S_SLOT = 34, 35, 36, 37, 38, 39
SK, SV, SWS, SX, SB2 = 40, 44, 48, 52, 56
S_KO, S_VO, S_IT = 60, 61, 62
S_HI = 64
S_T = 70

FUSED = [False]
def SC(): return ' sc1' if FUSED[0] else ''
def mf(d, a_, b_, c_):
    cs = "0" if c_ is None else f"v[{c_}:{c_+15}]"
    return f"v_mfma_f32_32x32x16_bf16 v[{d}:{d+15}], v[{a_}:{a_+3}], v[{b_}:{b_+3}], {cs}"

SCHED = os.environ.get('K2_SCHED', 'pair')
def step(a, tl, qt, first_skip=False):
    st = tl*4 + qt
    sb = st & 1; nb = sb ^ 1
    nq = (qt + 1) & 3; nk = tl if qt < 3 else (tl + 1) & 3
    pq = (qt - 1) & 3; pv = tl if qt > 0 else (tl - 1) & 3
    Sc = S[sb]; Sn = S[nb]
    def e(i):
        if NOEXP: a.i(f"v_mov_b32 v{Sc+i}, v{Sc+i}"); a.i(f"v_mov_b32 v{Sc+i}, v{Sc+i}")
        else: a.i(f"v_exp_f32 v{Sc+i}, v{Sc+i}")
    def c(i): a.i(f"v_cvt_pk_bf16_f32 v{P+i}, v{Sc+2*i}, v{Sc+2*i+1}")
    def m(x):
        if NOMF: a.i("s_nop 1")
        else: a.i(x)
    def kload():
        a.i(f"buffer_load_dwordx4 v[{K+8*tl}:{K+8*tl+3}], v{VL16}, s[{SK}:{SK+3}], s{S_KO} offen{SC()}")
        a.i(f"buffer_load_dwordx4 v[{K+8*tl+4}:{K+8*tl+7}], v{VL16}, s[{SK}:{SK+3}], s{S_KO} offen offset:1024{SC()}")
        a.i(f"s_add_u32 s{S_KO}, s{S_KO}, 2048")
    def vload():
        b = V + 8*((tl - 1) & 3)
        a.i(f"buffer_load_dwordx4 v[{b}:{b+3}], v{VL16}, s[{SV}:{SV+3}], s{S_VO} offen{SC()}")
        a.i(f"buffer_load_dwordx4 v[{b+4}:{b+7}], v{VL16}, s[{SV}:{SV+3}], s{S_VO} offen offset:1024{SC()}")
        a.i(f"s_add_u32 s{S_VO}, s{S_VO}, 2048")
    MS0 = mf(Sn, K+8*nk, Q+8*nq, None)
    MS1 = mf(Sn, K+8*nk+4, Q+8*nq+4, Sn)
    MP1 = mf(O+16*pq, V+8*pv+4, P+4, O+16*pq)
    MP0 = mf(O+16*qt, V+8*tl, P, O+16*qt)
    def mp1():
        if first_skip:
            a.i(f"s_cmp_eq_u32 s{S_IT}, 0")
            a.i(f"s_cbranch_scc1 L2_skip_first")
        m(MP1)
        if first_skip: a.label("L2_skip_first")
    if SCHED == 'even':
        if qt == 3: a.i("s_waitcnt vmcnt(10)")
        m(MS0)
        for i in range(0, 4): e(i)
        c(0); c(1)
        if qt == 3: kload()
        mp1()
        for i in range(4, 8): e(i)
        c(2); c(3)
        if qt == 1: vload()
        m(MS1)
        for i in range(8, 12): e(i)
        c(4); c(5)
        if qt == 0: a.i("s_waitcnt vmcnt(10)")
        m(MP0)
        for i in range(12, 16): e(i)
        c(6); c(7)
    else:
        G = int(os.environ.get('K2_GAP', '3'))
        if qt == 3: a.i("s_waitcnt vmcnt(10)")
        m(MS0)
        for i in range(0, G): e(i)
        m(MS1)
        for i in range(G, 8): e(i)
        c(0); c(1); c(2); c(3)
        if qt == 3: kload()
        if qt == 1: vload()
        mp1()
        for i in range(8, 8+G): e(i)
        if qt == 0: a.i("s_waitcnt vmcnt(10)")
        m(MP0)
        for i in range(8+G, 16): e(i)
        c(4); c(5); c(6); c(7)

def rowmax16(a, src, dst):
    a.i(f"v_max3_f32 v{dst}, v{src}, v{src+1}, v{src+2}")
    for k in range(3, 15, 2):
        a.i(f"v_max3_f32 v{dst}, v{dst}, v{src+k}, v{src+k+1}")
    a.i(f"v_max_f32 v{dst}, v{dst}, v{src+15}")

def attn_setup(a):
    a.i(f"s_lshl_b32 s{S_T}, s{S_H}, 6")
    a.i(f"s_lshl_b32 s{S_T+1}, s{S_WL}, 4")
    a.i(f"s_add_u32 s{S_T}, s{S_T}, s{S_T+1}")
    a.i(f"s_lshl_b32 s{S_T}, s{S_T}, 11")
    a.i(f"s_add_u32 s{S_T+1}, s{S_T}, {KF}")
    srd(a, SK, 32, 32768, off=f"s{S_T+1}")
    a.i(f"s_add_u32 s{S_T+1}, s{S_T}, {VF}")
    srd(a, SV, 32, 32768, off=f"s{S_T+1}")
    a.i(f"s_lshl_b32 s{S_T}, s{S_H}, 6")
    a.i(f"s_lshl_b32 s{S_T+1}, s{S_QB}, 2")
    a.i(f"s_add_u32 s{S_T}, s{S_T}, s{S_T+1}")
    a.i(f"s_lshl_b32 s{S_T}, s{S_T}, 11")
    a.i(f"s_add_u32 s{S_T+2}, s{S_T}, {QF}")
    a.i(f"s_add_u32 s{S_T+3}, s{S_T+2}, 4096")
    a.i(f"s_lshl_b32 s{S_T+4}, s{S_H}, 17")
    a.i(f"s_add_u32 s{S_T+4}, s{S_T+4}, {KF}")

def kv_load(a, i, withv=True):
    a.i(f"buffer_load_dwordx4 v[{K+8*i}:{K+8*i+3}], v{VL16}, s[{SK}:{SK+3}], s{S_KO} offen{SC()}")
    a.i(f"buffer_load_dwordx4 v[{K+8*i+4}:{K+8*i+7}], v{VL16}, s[{SK}:{SK+3}], s{S_KO} offen offset:1024{SC()}")
    if withv:
        a.i(f"buffer_load_dwordx4 v[{V+8*i}:{V+8*i+3}], v{VL16}, s[{SV}:{SV+3}], s{S_KO} offen{SC()}")
        a.i(f"buffer_load_dwordx4 v[{V+8*i+4}:{V+8*i+7}], v{VL16}, s[{SV}:{SV+3}], s{S_KO} offen offset:1024{SC()}")
    a.i(f"s_add_u32 s{S_KO}, s{S_KO}, 2048")

def attn_part1(a):
    for qt in range(4):
        so = S_T+2 if qt < 2 else S_T+3
        for h in range(2):
            a.i(f"buffer_load_dwordx4 v[{Q+8*qt+4*h}:{Q+8*qt+4*h+3}], v{VL16}, s[{SWS}:{SWS+3}], s{so} offen offset:{(qt&1)*2048+h*1024}{SC()}")
    a.i(f"buffer_load_dwordx4 v[{KT}:{KT+3}], v{VL16}, s[{SWS}:{SWS+3}], s{S_T+4} offen{SC()}")
    a.i(f"buffer_load_dwordx4 v[{KT+4}:{KT+7}], v{VL16}, s[{SWS}:{SWS+3}], s{S_T+4} offen offset:1024{SC()}")
    a.i(f"s_mov_b32 s{S_KO}, 0")
    kv_load(a, 0); kv_load(a, 1)

def qkv_poll(a, t):
    for x_ in range(48): assert (x_*43) >> 7 == x_ // 3
    for off_, r_ in ((0, S_T+5), (16, S_T+6), (32, S_T+7)):
        a.i(f"s_add_u32 s{r_}, s{S_H}, {off_}")
        a.i(f"s_mul_i32 s{r_}, s{r_}, 43")
        a.i(f"s_lshr_b32 s{r_}, s{r_}, 7")
    a.i(f"v_lshrrev_b32 v{t}, 4, v{VL16}")
    a.i(f"v_and_b32 v{t+1}, 15, v{t}")
    a.i(f"v_lshlrev_b32 v{t+1}, 2, v{t+1}")
    a.i(f"s_lshl_b32 s{S_T+6}, s{S_T+6}, 8")
    a.i(f"s_lshl_b32 s{S_T+7}, s{S_T+7}, 8")
    a.i(f"s_lshl_b32 s{S_T+5}, s{S_T+5}, 8")
    a.i(f"s_lshl_b32 s{S_T+8}, s{S_QB}, 2")
    a.i(f"s_add_u32 s{S_T+5}, s{S_T+5}, s{S_T+8}")
    a.i(f"v_add_u32 v{t+2}, s{S_T+6}, v{t+1}")
    a.i(f"v_add_u32 v{t+3}, s{S_T+7}, v{t+1}")
    a.i(f"v_mov_b32 v{t+4}, s{S_T+5}")
    a.i(f"v_cmp_gt_u32 vcc, 16, v{t}")
    a.i("s_nop 1")
    a.i(f"v_cndmask_b32 v{t+3}, v{t+3}, v{t+2}, vcc")
    a.i(f"v_cmp_gt_u32 vcc, 32, v{t}")
    a.i("s_nop 1")
    a.i(f"v_cndmask_b32 v{t+4}, v{t+4}, v{t+3}, vcc")
    poll_flags(a, t+4, t+5, SWS, S_T+8)

def attention(a, dbg):
    t = 248
    if os.environ.get('K2_PRIO', '1') != '0': a.i(f"s_setprio {os.environ.get('K2_PRIO', '1')}")
    if not FUSED[0]:
        attn_setup(a)
        attn_part1(a)
    kv_load(a, 2); kv_load(a, 3, withv=False)
    a.i(f"s_mov_b32 s{S_VO}, {3*2048}")
    for r in range(O, O+48): a.i(f"v_mov_b32 v{r}, 0")
    a.i(f"s_mov_b32 s{S_IT}, 0")
    a.i("s_waitcnt vmcnt(14)")
    TD = [S[0], S[1], T2, T3]
    for qt in range(4): a.i(mf(TD[qt], KT, Q+8*qt, None))
    for qt in range(4): a.i(mf(TD[qt], KT+4, Q+8*qt+4, TD[qt]))
    a.i("s_nop 8")
    for qt in range(4):
        rowmax16(a, TD[qt], t+qt)
    for qt in range(4): a.i(f"v_mov_b32 v{t+4+qt}, v{t+qt}")
    for r in range(O+48, O+64): a.i(f"v_mov_b32 v{r}, 0")
    for qt in range(4): a.i(f"v_permlane32_swap_b32 v{t+qt}, v{t+4+qt}")
    a.i("s_nop 1")
    for qt in range(4): a.i(f"v_max_f32 v{t+qt}, v{t+qt}, v{t+4+qt}")
    for qt in range(4): a.i(f"v_sub_f32 v{t+qt}, {f2u(-BIAS):#x}, v{t+qt}")
    for qt in range(4): a.i(f"v_cvt_pk_bf16_f32 v{t+qt}, v{t+qt}, 0")
    for qt in range(4): a.i(f"v_cndmask_b32 v{Q+8*qt+6}, v{Q+8*qt+6}, v{t+qt}, s[{S_HI}:{S_HI+1}]")
    a.i("s_waitcnt vmcnt(12)")
    a.i(mf(S[0], K, Q, None))
    a.i(mf(S[0], K+4, Q+4, S[0]))
    a.i("s_nop 7")
    a.i("s_nop 3")
    stamp(a, 5, SWS, dbg, tmp_v=252)
    a.label("L2_loop")
    for tl in range(4):
        for qt in range(4):
            step(a, tl, qt, first_skip=(tl == 0 and qt == 0))
    a.i(f"s_add_u32 s{S_IT}, s{S_IT}, 1")
    a.i(f"s_cmp_lt_u32 s{S_IT}, 4")
    a.i("s_cbranch_scc1 L2_loop")
    a.i("s_nop 1")
    a.i(mf(O+48, V+8*3+4, P+4, O+48))
    stamp(a, 6, SWS, dbg, tmp_v=252)
    a.i(f"s_lshl_b32 s{S_T}, s{S_WL}, 12")
    a.i(f"v_add_u32 v{t}, s{S_T}, v{VL16}")
    for qt in range(4):
        if qt == 3:
            a.i("s_nop 7")
        for g in range(4):
            a.i(f"ds_write_b128 v{t}, v[{O+16*qt+4*g}:{O+16*qt+4*g+3}] offset:{qt*16384+g*1024}")
    a.i("s_waitcnt vmcnt(0) lgkmcnt(0)")
    a.i("s_barrier")
    a.i(f"s_lshl_b32 s{S_T}, s{S_WL}, 14")
    a.i(f"v_add_u32 v{t}, s{S_T}, v{VL16}")
    for src in range(4):
        for g in range(4):
            a.i(f"ds_read_b128 v[{O+16*src+4*g}:{O+16*src+4*g+3}], v{t} offset:{src*4096+g*1024}")
    a.i("s_waitcnt lgkmcnt(0)")
    for r in range(16):
        a.i(f"v_add_f32 v{O+r}, v{O+r}, v{O+16+r}")
        a.i(f"v_add_f32 v{O+32+r}, v{O+32+r}, v{O+48+r}")
    for r in range(16):
        a.i(f"v_add_f32 v{O+r}, v{O+r}, v{O+32+r}")
    a.i(f"s_mov_b32 s{S_T+6}, 0")
    a.label("L2_norm")
    a.i(f"v_mov_b32 v{t}, v{O+12}")
    a.i(f"v_mov_b32 v{t+1}, v{O+12}")
    a.i("s_nop 1")
    a.i(f"v_permlane32_swap_b32 v{t}, v{t+1}")
    a.i("s_nop 1")
    a.i(f"v_rcp_f32 v{t+2}, v{t+1}")
    a.i("s_nop 0")
    for r in range(16):
        a.i(f"v_mul_f32 v{O+r}, v{O+r}, v{t+2}")
    a.i(f"s_cmp_lg_u32 s{S_T+6}, 0")
    a.i("s_cbranch_scc1 L2_store")
    a.i(f"v_mov_b32 v{t+3}, {f2u(2.0**-100):#x}")
    a.i(f"v_mov_b32 v{t+4}, {f2u(2.0**120):#x}")
    a.i(f"v_cmp_nge_f32 vcc, v{t+1}, v{t+3}")
    a.i(f"v_cmp_nle_f32 s[{S_T+8}:{S_T+9}], v{t+1}, v{t+4}")
    a.i(f"s_or_b64 s[{S_T+8}:{S_T+9}], s[{S_T+8}:{S_T+9}], vcc")
    a.i(f"v_mul_f32 v{t+5}, 0, v{O}")
    for r in range(1, 16):
        a.i(f"v_fma_f32 v{t+5}, v{O+r}, 0, v{t+5}")
    a.i(f"v_cmp_u_f32 vcc, v{t+5}, v{t+5}")
    a.i(f"s_or_b64 s[{S_T+8}:{S_T+9}], s[{S_T+8}:{S_T+9}], vcc")
    a.i(f"s_cmp_lg_u64 s[{S_T+8}:{S_T+9}], 0")
    a.i("s_cbranch_scc1 L2_slow")
    a.label("L2_store")
    for p in range(8):
        a.i(f"v_cvt_pk_bf16_f32 v{P+p}, v{O+2*p}, v{O+2*p+1}")
    a.i(f"s_lshl_b32 s{S_T}, s{S_QB}, 2")
    a.i(f"s_add_u32 s{S_T}, s{S_T}, s{S_WL}")
    a.i(f"s_lshl_b32 s{S_T}, s{S_T}, 4")
    a.i(f"s_add_u32 s{S_T}, s{S_T}, s{S_H}")
    a.i(f"s_lshl_b32 s{S_T}, s{S_T}, 11")
    a.i(f"s_add_u32 s{S_T}, s{S_T}, {OF}")
    a.i(f"buffer_store_dwordx4 v[{P}:{P+3}], v{VL16}, s[{SWS}:{SWS+3}], s{S_T} offen sc1")
    a.i(f"buffer_store_dwordx4 v[{P+4}:{P+7}], v{VL16}, s[{SWS}:{SWS+3}], s{S_T} offen offset:1024 sc1")
    if FUSED[0]:
        a.i(f"s_lshl_b32 s{S_T}, s{S_QB}, 8")
        a.i(f"s_lshl_b32 s{S_T+1}, s{S_H}, 2")
        a.i(f"s_add_u32 s{S_T}, s{S_T}, s{S_T+1}")
        a.i(f"s_add_u32 s{S_T}, s{S_T}, {FLG + FO_OFF}")
        a.i("s_waitcnt vmcnt(0)")
        last_arriver_flag(a, 12, 4, S_T, t, SWS, S_T+1)
    stamp(a, 7, SWS, dbg, tmp_v=252)
    a.i("s_endpgm")
    a.label("L2_slow")
    a.i(f"s_lshl_b32 s{S_T}, s{S_WL}, 11")
    a.i(f"s_add_u32 s{S_T}, s{S_T}, s{S_T+2}")
    a.i(f"buffer_load_dwordx4 v[{Q}:{Q+3}], v{VL16}, s[{SWS}:{SWS+3}], s{S_T} offen{SC()}")
    a.i(f"buffer_load_dwordx4 v[{Q+4}:{Q+7}], v{VL16}, s[{SWS}:{SWS+3}], s{S_T} offen offset:1024{SC()}")
    a.i(f"v_mov_b32 v{t}, 0xff800000")
    a.i(f"s_mov_b32 s{S_T+1}, s{S_T+4}")
    a.i(f"s_mov_b32 s{S_IT}, 0")
    a.label("L2_slow1")
    a.i(f"buffer_load_dwordx4 v[{KT}:{KT+3}], v{VL16}, s[{SWS}:{SWS+3}], s{S_T+1} offen{SC()}")
    a.i(f"buffer_load_dwordx4 v[{KT+4}:{KT+7}], v{VL16}, s[{SWS}:{SWS+3}], s{S_T+1} offen offset:1024{SC()}")
    a.i("s_waitcnt vmcnt(0)")
    a.i(mf(S[0], KT, Q, None))
    a.i(mf(S[0], KT+4, Q+4, S[0]))
    a.i("s_nop 7")
    a.i("s_nop 3")
    rowmax16(a, S[0], t+1)
    a.i(f"v_max_f32 v{t}, v{t}, v{t+1}")
    a.i(f"s_add_u32 s{S_T+1}, s{S_T+1}, 2048")
    a.i(f"s_add_u32 s{S_IT}, s{S_IT}, 1")
    a.i(f"s_cmp_lt_u32 s{S_IT}, 64")
    a.i("s_cbranch_scc1 L2_slow1")
    a.i(f"v_mov_b32 v{t+1}, v{t}")
    a.i("s_nop 1")
    a.i(f"v_permlane32_swap_b32 v{t}, v{t+1}")
    a.i("s_nop 1")
    a.i(f"v_max_f32 v{t}, v{t}, v{t+1}")
    a.i(f"v_sub_f32 v{t}, 0, v{t}")
    a.i(f"v_cvt_pk_bf16_f32 v{t+1}, v{t}, 0")
    a.i(f"v_lshlrev_b32 v{t+2}, 16, v{t+1}")
    a.i(f"v_sub_f32 v{t+3}, v{t}, v{t+2}")
    a.i(f"v_cvt_pk_bf16_f32 v{t+4}, v{t+3}, 0")
    a.i(f"v_lshlrev_b32 v{t+5}, 16, v{t+4}")
    a.i(f"v_sub_f32 v{t+3}, v{t+3}, v{t+5}")
    a.i(f"v_cvt_pk_bf16_f32 v{t+6}, v{t+3}, 0")
    a.i(f"v_or_b32 v{t+1}, v{t+1}, v{t+5}")
    a.i(f"v_cndmask_b32 v{Q+6}, v{Q+6}, v{t+1}, s[{S_HI}:{S_HI+1}]")
    a.i(f"v_cndmask_b32 v{Q+7}, v{Q+7}, v{t+6}, s[{S_HI}:{S_HI+1}]")
    for r in range(O, O+16): a.i(f"v_mov_b32 v{r}, 0")
    a.i(f"s_mov_b32 s{S_T+1}, s{S_T+4}")
    a.i(f"s_mov_b32 s{S_IT}, 0")
    a.label("L2_slow2")
    a.i(f"s_add_u32 s{S_T}, s{S_T+1}, {VF-KF}")
    a.i(f"buffer_load_dwordx4 v[{KT}:{KT+3}], v{VL16}, s[{SWS}:{SWS+3}], s{S_T+1} offen{SC()}")
    a.i(f"buffer_load_dwordx4 v[{KT+4}:{KT+7}], v{VL16}, s[{SWS}:{SWS+3}], s{S_T+1} offen offset:1024{SC()}")
    a.i(f"buffer_load_dwordx4 v[{T2}:{T2+3}], v{VL16}, s[{SWS}:{SWS+3}], s{S_T} offen{SC()}")
    a.i(f"buffer_load_dwordx4 v[{T2+4}:{T2+7}], v{VL16}, s[{SWS}:{SWS+3}], s{S_T} offen offset:1024{SC()}")
    a.i("s_waitcnt vmcnt(0)")
    a.i(mf(S[0], KT, Q, None))
    a.i(mf(S[0], KT+4, Q+4, S[0]))
    a.i("s_nop 7")
    a.i("s_nop 3")
    for i in range(16): a.i(f"v_exp_f32 v{S[0]+i}, v{S[0]+i}")
    a.i("s_nop 0")
    for i in range(8): a.i(f"v_cvt_pk_bf16_f32 v{P+i}, v{S[0]+2*i}, v{S[0]+2*i+1}")
    a.i("s_nop 1")
    a.i(mf(O, T2, P, O))
    a.i(mf(O, T2+4, P+4, O))
    a.i(f"s_add_u32 s{S_T+1}, s{S_T+1}, 2048")
    a.i(f"s_add_u32 s{S_IT}, s{S_IT}, 1")
    a.i(f"s_cmp_lt_u32 s{S_IT}, 64")
    a.i("s_cbranch_scc1 L2_slow2")
    a.i("s_nop 7")
    a.i("s_nop 7")
    a.i(f"s_mov_b32 s{S_T+6}, 1")
    a.i("s_branch L2_norm")

AF = 8
HB = 72
WFB = [128, 136]
XR = 144
BR = 152
VA = 160
VW1, VW2 = 161, 162
VT0, VT1 = 163, 164
SW2 = 60
S_M0 = 66; S_WO = 67; S_H0 = 68; S_H1 = 69

def w2_lane_setup(a, t):
    a.i(f"v_and_b32 v{t}, 63, v0")
    a.i(f"v_lshrrev_b32 v{t+1}, 3, v{t}")
    a.i(f"v_bfe_u32 v{t+2}, v{t}, 4, 1")
    a.i(f"v_lshlrev_b32 v{t+2}, 2, v{t+2}")
    a.i(f"v_and_b32 v{t+3}, 7, v{t}")
    a.i(f"v_xor_b32 v{t+3}, v{t+3}, v{t+2}")
    a.i(f"v_lshlrev_b32 v{t+3}, 4, v{t+3}")
    a.i(f"v_mul_u32_u24 v{t+1}, 896, v{t+1}")
    a.i(f"v_add_u32 v{VW1}, v{t+1}, v{t+3}")
    a.i(f"v_add_u32 v{VW2}, {8*896 - 1024}, v{VW1}")
    a.i(f"v_lshrrev_b32 v{t+1}, 5, v{t}")
    a.i(f"v_lshlrev_b32 v{t+1}, 2, v{t+1}")
    a.i(f"v_bfe_u32 v{t+2}, v{t}, 2, 2")
    a.i(f"v_add_u32 v{t+1}, v{t+1}, v{t+2}")
    a.i(f"v_lshlrev_b32 v{t+1}, 7, v{t+1}")
    a.i(f"v_lshrrev_b32 v{t+2}, 1, v{t+2}")
    a.i(f"v_lshlrev_b32 v{t+2}, 6, v{t+2}")
    a.i(f"v_add_u32 v{t+1}, v{t+1}, v{t+2}")
    a.i(f"v_bfe_u32 v{t+2}, v{t}, 4, 1")
    a.i(f"v_lshlrev_b32 v{t+2}, 5, v{t+2}")
    a.i(f"v_add_u32 v{t+1}, v{t+1}, v{t+2}")
    a.i(f"v_and_b32 v{t+2}, 3, v{t}")
    a.i(f"v_lshlrev_b32 v{t+2}, 3, v{t+2}")
    a.i(f"v_add_u32 v{t+1}, v{t+1}, v{t+2}")
    a.i(f"v_add_u32 v{VT0}, s{S_M0}, v{t+1}")
    a.i(f"v_xor_b32 v{VT1}, 64, v{VT0}")

def ffn_issue(a, k):
    b = HB + 8*(k % 7)
    a.i(f"s_add_u32 m0, s{S_M0}, {2048*(k % 7)}")
    a.i(f"buffer_load_dwordx4 v[{b}:{b+3}], v{VA}, s[{SWS}:{SWS+3}], s{S_H0} offen{SC()}")
    a.i(f"buffer_load_dwordx4 v[{b+4}:{b+7}], v{VA}, s[{SWS}:{SWS+3}], s{S_H1} offen{SC()}")
    a.i(f"buffer_load_dwordx4 v{VW1}, s[{SW2}:{SW2+3}], s{S_WO} offen lds")
    a.i(f"buffer_load_dwordx4 v{VW2}, s[{SW2}:{SW2+3}], s{S_WO} offen offset:1024 lds")
    a.i(f"v_add_u32 v{VA}, 1024, v{VA}")
    a.i(f"s_add_u32 s{S_WO}, s{S_WO}, {16*896}")

def ffn_trreads(a, k):
    w = WFB[k & 1]; off = 2048*(k % 7)
    for ci, va in enumerate((VT0, VT1)):
        a.i(f"ds_read_b64_tr_b16 v[{w+4*ci}:{w+4*ci+1}], v{va} offset:{off}")
        a.i(f"ds_read_b64_tr_b16 v[{w+4*ci+2}:{w+4*ci+3}], v{va} offset:{off+1024}")

def wo_prep(a, t):
    a.i(f"s_lshl_b32 s{S_T}, s{S_XCD}, 2")
    a.i(f"s_add_u32 s{S_T}, s{S_T}, s{S_SLOT}")
    a.i(f"s_sub_u32 s{S_T}, s{S_T}, 28")
    a.i(f"s_lshl_b32 s{S_T}, s{S_T}, 2")
    a.i(f"s_add_u32 s{S_T}, s{S_T}, s{S_WL}")
    a.i(f"s_cmp_ge_u32 s{S_T}, 112")
    a.i("s_cbranch_scc1 L2_ffn_none")
    a.i(f"s_mul_i32 s{S_T+1}, s{S_T}, 147")
    a.i(f"s_lshr_b32 s{S_T+1}, s{S_T+1}, 10")
    a.i(f"s_mul_i32 s{S_T+2}, s{S_T+1}, 7")
    a.i(f"s_sub_u32 s{S_T+2}, s{S_T}, s{S_T+2}")
    srd(a, SW2, 20, 448*896)
    a.i(f"s_mul_i32 s{S_WO}, s{S_T+1}, {28*896}")
    a.i(f"s_lshl_b32 s{S_T+3}, s{S_T+2}, 7")
    a.i(f"s_add_u32 s{S_WO}, s{S_WO}, s{S_T+3}")
    for k in range(2):
        a.i(f"s_add_u32 m0, s{S_M0}, {2048*k}")
        a.i("s_nop 0")
        a.i(f"buffer_load_dwordx4 v{VW1}, s[{SW2}:{SW2+3}], s{S_WO} offen lds")
        a.i(f"buffer_load_dwordx4 v{VW2}, s[{SW2}:{SW2+3}], s{S_WO} offen offset:1024 lds")
        a.i(f"s_add_u32 s{S_WO}, s{S_WO}, {16*896}")
    a.i("s_waitcnt vmcnt(0)")
    ffn_trreads(a, 0)
    ffn_trreads(a, 1)
    a.i(f"v_mov_b32 v{t+4}, 0")
    a.i("s_waitcnt lgkmcnt(0)")
    for ci in range(2):
        a.i(f"v_cndmask_b32 v{WFB[1]+4*ci+2}, v{WFB[1]+4*ci+2}, v{t+4}, s[{S_HI}:{S_HI+1}]")
        a.i(f"v_cndmask_b32 v{WFB[1]+4*ci+3}, v{WFB[1]+4*ci+3}, v{t+4}, s[{S_HI}:{S_HI+1}]")
    a.i(f"s_lshl_b32 s{S_T+3}, s{S_T+2}, 16")
    a.i(f"s_lshl_b32 s{S_T+4}, s{S_T+1}, 11")
    a.i(f"s_add_u32 s{S_T+3}, s{S_T+3}, s{S_T+4}")
    a.i(f"s_add_u32 s{S_T+3}, s{S_T+3}, {WOT}")
    a.i(f"s_add_u32 s{S_T+4}, s{S_T+3}, 32768")
    for ci, so in enumerate((S_T+3, S_T+4)):
        a.i(f"buffer_store_dwordx4 v[{WFB[0]+4*ci}:{WFB[0]+4*ci+3}], v{VL16}, s[{SWS}:{SWS+3}], s{so} offen sc1")
        a.i(f"buffer_store_dwordx4 v[{WFB[1]+4*ci}:{WFB[1]+4*ci+3}], v{VL16}, s[{SWS}:{SWS+3}], s{so} offen offset:1024 sc1")
    a.i("s_branch L2_ffn_none")

def ffn(a, dbg):
    t = 248
    for task in range(128): assert (task*147) >> 10 == task // 7
    for q_ in range(32): assert (q_*37) >> 8 == q_ // 7
    a.i(f"s_lshl_b32 s{S_M0}, s{S_WL}, 14")
    a.i(f"s_add_u32 s{S_M0}, s{S_M0}, {RB}")
    w2_lane_setup(a, t)
    a.i(f"s_cmp_ge_u32 s{S_SLOT}, {0 if os.environ.get('K2_NOFFN') else 28}")
    a.i("s_cbranch_scc1 L2_wo_prep")
    a.i(f"s_mul_i32 s{S_T+4}, s{S_SLOT}, 37")
    a.i(f"s_lshr_b32 s{S_T+4}, s{S_T+4}, 8")
    a.i(f"s_mul_i32 s{S_T+5}, s{S_T+4}, 7")
    a.i(f"s_sub_u32 s{S_T+5}, s{S_SLOT}, s{S_T+5}")
    a.i(f"s_lshl_b32 s{S_T+9}, s{S_T+5}, 7")
    a.i(f"s_lshl_b32 s{S_T+6}, s{S_XCD}, 2")
    a.i(f"s_add_u32 s{S_T+4}, s{S_T+4}, s{S_T+6}")
    a.i(f"s_lshl_b32 s{S_T+4}, s{S_T+4}, 1")
    a.i(f"s_lshl_b32 s{S_T+5}, s{S_T+5}, 1")
    a.i(f"s_lshr_b32 s{S_T+6}, s{S_WL}, 1")
    a.i(f"s_add_u32 s{S_T+6}, s{S_T+6}, s{S_T+4}")
    a.i(f"s_and_b32 s{S_T+7}, s{S_WL}, 1")
    a.i(f"s_add_u32 s{S_T+7}, s{S_T+7}, s{S_T+5}")
    a.i(f"s_mul_i32 s{S_T+8}, s{S_WL}, {28*1024}")
    a.i(f"s_mul_i32 s{S_H0}, s{S_T+4}, {112*1024}")
    a.i(f"s_add_u32 s{S_H0}, s{S_H0}, s{S_T+8}")
    a.i(f"s_add_u32 s{S_H0}, s{S_H0}, {HF}")
    a.i(f"s_add_u32 s{S_H1}, s{S_H0}, {112*1024}")
    srd(a, SW2, 28, 1792*896)
    a.i(f"s_mul_i32 s{S_WO}, s{S_WL}, {448*896}")
    a.i(f"s_add_u32 s{S_WO}, s{S_WO}, s{S_T+9}")
    a.i(f"v_mov_b32 v{VA}, v{VL16}")
    if int(os.environ.get('K2_FDELAY', '6')): a.i(f"s_sleep {int(os.environ.get('K2_FDELAY', '6'))}")
    for k in range(7): ffn_issue(a, k)
    srd(a, SX, 16, 2048*896)
    srd(a, SB2, 30, 896)
    a.i(f"v_and_b32 v{t}, 31, v0")
    a.i(f"v_mul_u32_u24 v{t}, 896, v{t}")
    a.i(f"v_bfe_u32 v{t+1}, v0, 5, 1")
    a.i(f"v_lshlrev_b32 v{t+1}, 3, v{t+1}")
    a.i(f"v_add_u32 v{t}, v{t}, v{t+1}")
    a.i(f"s_mul_i32 s{S_T+8}, s{S_T+6}, {32*896}")
    a.i(f"s_lshl_b32 s{S_T+9}, s{S_T+7}, 6")
    a.i(f"s_add_u32 s{S_T+8}, s{S_T+8}, s{S_T+9}")
    for r in range(AF, AF+64): a.i(f"v_mov_b32 v{r}, 0")
    a.i("s_waitcnt vmcnt(24)")
    ffn_trreads(a, 0)
    nout = 24
    for k in range(28):
        last = min(k + 6, 27)
        extra = 8 if k > 21 else 0
        if k + 1 <= 27:
            a.i(f"s_waitcnt vmcnt({4*(last - (k+1)) + extra})")
            ffn_trreads(a, k + 1)
            a.i("s_waitcnt lgkmcnt(4)")
        else:
            a.i("s_waitcnt lgkmcnt(0)")
        b = HB + 8*(k % 7); w = WFB[k & 1]
        for ti in range(2):
            for ci in range(2):
                d = AF + 16*(ti*2+ci)
                a.i(mf(d, w+4*ci, b+4*ti, d))
        if k + 7 <= 27: ffn_issue(a, k + 7)
        if k == 21:
            for g in range(4):
                a.i(f"buffer_load_dwordx2 v[{XR+2*g}:{XR+2*g+1}], v{t}, s[{SX}:{SX+3}], s{S_T+8} offen offset:{16*g}")
            for g in range(4):
                a.i(f"buffer_load_dwordx2 v[{BR+2*g}:{BR+2*g+1}], v{t+1}, s[{SB2}:{SB2+3}], s{S_T+9} offen offset:{16*g}")
    stamp(a, 8, SWS, dbg, tmp_v=252)
    a.i(f"v_add_u32 v{t+2}, s{S_M0}, v{VL16}")
    a.i("s_nop 7")
    a.i("s_nop 3")
    for tile in range(4):
        for g in range(4):
            a.i(f"ds_write_b128 v{t+2}, v[{AF+16*tile+4*g}:{AF+16*tile+4*g+3}] offset:{tile*4096+g*1024}")
    a.i("s_waitcnt vmcnt(0) lgkmcnt(0)")
    a.i("s_barrier")
    a.i(f"s_lshl_b32 s{S_T+8}, s{S_WL}, 12")
    a.i(f"s_add_u32 s{S_T+8}, s{S_T+8}, {RB}")
    a.i(f"v_add_u32 v{t+2}, s{S_T+8}, v{VL16}")
    for src in range(4):
        for g in range(4):
            a.i(f"ds_read_b128 v[{AF+16*src+4*g}:{AF+16*src+4*g+3}], v{t+2} offset:{src*16384+g*1024}")
        if src == 2: a.i("s_waitcnt lgkmcnt(0)")
    a.i("s_waitcnt lgkmcnt(0)")
    for r in range(16):
        a.i(f"v_add_f32 v{AF+r}, v{AF+r}, v{AF+16+r}")
        a.i(f"v_add_f32 v{AF+32+r}, v{AF+32+r}, v{AF+48+r}")
    for r in range(16):
        a.i(f"v_add_f32 v{AF+r}, v{AF+r}, v{AF+32+r}")
    for src in (XR, BR):
        for k in range(8):
            a.i(f"v_lshlrev_b32 v{t+3}, 16, v{src+k}")
            a.i(f"v_and_b32 v{t+4}, 0xffff0000, v{src+k}")
            a.i(f"v_add_f32 v{AF+2*k}, v{AF+2*k}, v{t+3}")
            a.i(f"v_add_f32 v{AF+2*k+1}, v{AF+2*k+1}, v{t+4}")
    a.i(f"s_mul_i32 s{S_T+8}, s{S_T+6}, 14")
    a.i(f"s_add_u32 s{S_T+8}, s{S_T+8}, s{S_T+7}")
    a.i(f"s_lshl_b32 s{S_T+8}, s{S_T+8}, 12")
    a.i(f"s_add_u32 s{S_T+8}, s{S_T+8}, {FF}")
    for g in range(4):
        a.i(f"buffer_store_dwordx4 v[{AF+4*g}:{AF+4*g+3}], v{VL16}, s[{SWS}:{SWS+3}], s{S_T+8} offen offset:{1024*g} sc1")
    stamp(a, 9, SWS, dbg, tmp_v=252)
    a.i("s_endpgm")
    a.label("L2_wo_prep")
    wo_prep(a, t)
    a.label("L2_ffn_none")
    a.i("s_barrier")
    a.i("s_endpgm")

WOB = 168
OB = 72

def ffn_fused(a, dbg):
    t = 248
    a.i(f"s_lshl_b32 s{S_M0}, s{S_WL}, 14")
    a.i(f"s_add_u32 s{S_M0}, s{S_M0}, {RB}")
    w2_lane_setup(a, t)
    a.i(f"s_cmp_ge_u32 s{S_SLOT}, 28")
    a.i("s_cbranch_scc1 L2_ffn_none")
    a.i(f"s_mul_i32 s{S_T+4}, s{S_SLOT}, 37")
    a.i(f"s_lshr_b32 s{S_T+4}, s{S_T+4}, 8")
    a.i(f"s_mul_i32 s{S_T+5}, s{S_T+4}, 7")
    a.i(f"s_sub_u32 s{S_T+5}, s{S_SLOT}, s{S_T+5}")
    a.i(f"s_lshl_b32 s{S_T+3}, s{S_T+5}, 7")
    a.i(f"s_lshl_b32 s{S_T+6}, s{S_XCD}, 2")
    a.i(f"s_add_u32 s{S_T+4}, s{S_T+4}, s{S_T+6}")
    a.i(f"s_lshl_b32 s{S_T+4}, s{S_T+4}, 1")
    a.i(f"s_lshl_b32 s{S_T+5}, s{S_T+5}, 1")
    a.i(f"s_lshr_b32 s{S_T+6}, s{S_WL}, 1")
    a.i(f"s_add_u32 s{S_T+6}, s{S_T+6}, s{S_T+4}")
    a.i(f"s_and_b32 s{S_T+7}, s{S_WL}, 1")
    a.i(f"s_add_u32 s{S_T+7}, s{S_T+7}, s{S_T+5}")
    a.i(f"s_mul_i32 s{S_T+8}, s{S_WL}, {28*1024}")
    a.i(f"s_mul_i32 s{S_H0}, s{S_T+4}, {112*1024}")
    a.i(f"s_add_u32 s{S_H0}, s{S_H0}, s{S_T+8}")
    a.i(f"s_add_u32 s{S_H0}, s{S_H0}, {HF}")
    a.i(f"s_add_u32 s{S_H1}, s{S_H0}, {112*1024}")
    srd(a, SW2, 28, 1792*896)
    a.i(f"s_mul_i32 s{S_WO}, s{S_WL}, {448*896}")
    a.i(f"s_add_u32 s{S_WO}, s{S_WO}, s{S_T+3}")
    a.i(f"v_mov_b32 v{VA}, v{VL16}")
    vm = []
    def wait_for(names):
        last = max(k for k, n in enumerate(vm) if n in names)
        a.i(f"s_waitcnt vmcnt({len(vm) - 1 - last})")
    def w2dma(k):
        a.i(f"s_add_u32 m0, s{S_M0}, {2048*(k % 7)}")
        a.i("s_nop 0")
        a.i(f"buffer_load_dwordx4 v{VW1}, s[{SW2}:{SW2+3}], s{S_WO} offen lds")
        a.i(f"buffer_load_dwordx4 v{VW2}, s[{SW2}:{SW2+3}], s{S_WO} offen offset:1024 lds")
        a.i(f"s_add_u32 s{S_WO}, s{S_WO}, {16*896}")
        vm.extend([f"W{k}"]*2)
    def hload(k):
        b = HB + 8*(k % 7)
        a.i(f"buffer_load_dwordx4 v[{b}:{b+3}], v{VA}, s[{SWS}:{SWS+3}], s{S_H0} offen sc1")
        a.i(f"buffer_load_dwordx4 v[{b+4}:{b+7}], v{VA}, s[{SWS}:{SWS+3}], s{S_H1} offen sc1")
        a.i(f"v_add_u32 v{VA}, 1024, v{VA}")
        vm.extend([f"H{k}"]*2)
    for k in range(7): w2dma(k)
    a.i("s_waitcnt vmcnt(0)")
    vm.clear()
    for r in range(AF, AF+64): a.i(f"v_mov_b32 v{r}, 0")
    a.i(f"s_cmp_lg_u32 s{S_WL}, 0")
    a.i("s_cbranch_scc1 L2_ffn_follow")
    a.i(f"v_lshrrev_b32 v{t}, 2, v{VL16}")
    a.i(f"v_and_b32 v{t}, 60, v{t}")
    a.i(f"s_lshr_b32 s{S_T+8}, s{S_T+4}, 2")
    a.i(f"s_lshl_b32 s{S_T+8}, s{S_T+8}, 8")
    a.i(f"s_add_u32 s{S_T+8}, s{S_T+8}, {FH_OFF}")
    a.i(f"v_add_u32 v{t}, s{S_T+8}, v{t}")
    poll_flags(a, t, t+1, SWS, S_T+8)
    lds_signal(a, 8, t)
    a.i("s_branch L2_ffn_go")
    a.label("L2_ffn_follow")
    lds_wait(a, 8, t, S_T+8)
    a.label("L2_ffn_go")
    stamp(a, 14, SWS, dbg, tmp_v=252)
    for k in range(7): hload(k)
    srd(a, SX, 16, 2048*896)
    srd(a, SB2, 30, 896)
    a.i(f"v_and_b32 v{t}, 31, v0")
    a.i(f"v_mul_u32_u24 v{t}, 896, v{t}")
    a.i(f"v_bfe_u32 v{t+1}, v0, 5, 1")
    a.i(f"v_lshlrev_b32 v{t+1}, 3, v{t+1}")
    a.i(f"v_add_u32 v{t}, v{t}, v{t+1}")
    a.i(f"s_mul_i32 s{S_T+8}, s{S_T+6}, {32*896}")
    a.i(f"s_lshl_b32 s{S_T+9}, s{S_T+7}, 6")
    a.i(f"s_add_u32 s{S_T+8}, s{S_T+8}, s{S_T+9}")
    ffn_trreads(a, 0)
    for k in range(28):
        if k + 1 <= 27:
            names = [f"H{k}"] + ([f"W{k+1}"] if f"W{k+1}" in vm else [])
            wait_for(names)
            ffn_trreads(a, k + 1)
            a.i("s_waitcnt lgkmcnt(4)")
        else:
            wait_for([f"H{k}"])
            a.i("s_waitcnt lgkmcnt(0)")
        b = HB + 8*(k % 7); w = WFB[k & 1]
        for ti in range(2):
            for ci in range(2):
                d = AF + 16*(ti*2+ci)
                a.i(mf(d, w+4*ci, b+4*ti, d))
        if k + 7 <= 27:
            hload(k + 7); w2dma(k + 7)
        if k == 21:
            for g in range(4):
                a.i(f"buffer_load_dwordx2 v[{XR+2*g}:{XR+2*g+1}], v{t}, s[{SX}:{SX+3}], s{S_T+8} offen offset:{16*g}")
            for g in range(4):
                a.i(f"buffer_load_dwordx2 v[{BR+2*g}:{BR+2*g+1}], v{t+1}, s[{SB2}:{SB2+3}], s{S_T+9} offen offset:{16*g}")
            vm.extend(["xb"]*8)
    stamp(a, 8, SWS, dbg, tmp_v=252)
    srd(a, SW2, 20, 448*896)
    a.i(f"s_mul_i32 s{S_WO}, s{S_WL}, {4*28*896}")
    a.i(f"s_add_u32 s{S_WO}, s{S_WO}, s{S_T+3}")
    for i in range(8):
        a.i(f"s_add_u32 m0, s{S_M0}, {2048*i}")
        a.i("s_nop 0")
        a.i(f"buffer_load_dwordx4 v{VW1}, s[{SW2}:{SW2+3}], s{S_WO} offen lds")
        a.i(f"buffer_load_dwordx4 v{VW2}, s[{SW2}:{SW2+3}], s{S_WO} offen offset:1024 lds")
        a.i(f"s_add_u32 s{S_WO}, s{S_WO}, {16*896 if (i & 1) == 0 else 12*896}")
    a.i("s_waitcnt vmcnt(0)")
    a.i(f"v_mov_b32 v{t+4}, 0")
    for i in range(8):
        w = WOB + 8*i
        for ci, va in enumerate((VT0, VT1)):
            a.i(f"ds_read_b64_tr_b16 v[{w+4*ci}:{w+4*ci+1}], v{va} offset:{2048*i}")
            a.i(f"ds_read_b64_tr_b16 v[{w+4*ci+2}:{w+4*ci+3}], v{va} offset:{2048*i+1024}")
        if i in (2, 5): a.i("s_waitcnt lgkmcnt(0)")
    a.i("s_waitcnt lgkmcnt(0)")
    for i in range(1, 8, 2):
        w = WOB + 8*i
        for ci in range(2):
            a.i(f"v_cndmask_b32 v{w+4*ci+2}, v{w+4*ci+2}, v{t+4}, s[{S_HI}:{S_HI+1}]")
            a.i(f"v_cndmask_b32 v{w+4*ci+3}, v{w+4*ci+3}, v{t+4}, s[{S_HI}:{S_HI+1}]")
    stamp(a, 9, SWS, dbg, tmp_v=252)
    a.i("s_barrier")
    a.i(f"s_cmp_lg_u32 s{S_WL}, 0")
    a.i("s_cbranch_scc1 L2_o_follow")
    a.i(f"v_lshrrev_b32 v{t+2}, 2, v{VL16}")
    a.i(f"v_and_b32 v{t+2}, 60, v{t+2}")
    a.i(f"s_lshr_b32 s{S_T}, s{S_T+4}, 2")
    a.i(f"s_lshl_b32 s{S_T}, s{S_T}, 8")
    a.i(f"s_add_u32 s{S_T}, s{S_T}, {FO_OFF}")
    a.i(f"v_add_u32 v{t+2}, s{S_T}, v{t+2}")
    poll_flags(a, t+2, t+3, SWS, S_T)
    lds_signal(a, 16, t+2)
    a.i("s_branch L2_o_go")
    a.label("L2_o_follow")
    lds_wait(a, 16, t+2, S_T)
    a.label("L2_o_go")
    stamp(a, 10, SWS, dbg, tmp_v=252)
    a.i(f"s_lshl_b32 s{S_T}, s{S_T+4}, 15")
    a.i(f"s_lshl_b32 s{S_T+1}, s{S_WL}, 13")
    a.i(f"s_add_u32 s{S_T}, s{S_T}, s{S_T+1}")
    a.i(f"s_add_u32 s{S_T}, s{S_T}, {OF}")
    a.i(f"s_add_u32 s{S_T+1}, s{S_T}, 32768")
    a.i(f"v_add_u32 v{t+2}, 4096, v{VL16}")
    for i in range(8):
        for ti in range(2):
            vo = VL16 if i < 4 else t+2
            a.i(f"buffer_load_dwordx4 v[{OB+8*i+4*ti}:{OB+8*i+4*ti+3}], v{vo}, s[{SWS}:{SWS+3}], s{S_T+ti} offen offset:{(i&3)*1024} sc1")
    for i in range(8):
        a.i(f"s_waitcnt vmcnt({2*(7-i)})")
        for ti in range(2):
            for ci in range(2):
                d = AF + 16*(ti*2+ci)
                a.i(mf(d, WOB+8*i+4*ci, OB+8*i+4*ti, d))
    a.i(f"v_add_u32 v{t+2}, s{S_M0}, v{VL16}")
    a.i("s_nop 7")
    for tile in range(4):
        if tile == 3: a.i("s_nop 3")
        for g in range(4):
            a.i(f"ds_write_b128 v{t+2}, v[{AF+16*tile+4*g}:{AF+16*tile+4*g+3}] offset:{tile*4096+g*1024}")
    a.i("s_waitcnt lgkmcnt(0)")
    a.i("s_barrier")
    a.i(f"s_lshl_b32 s{S_T}, s{S_WL}, 12")
    a.i(f"s_add_u32 s{S_T}, s{S_T}, {RB}")
    a.i(f"v_add_u32 v{t+2}, s{S_T}, v{VL16}")
    for src in range(4):
        for g in range(4):
            a.i(f"ds_read_b128 v[{AF+16*src+4*g}:{AF+16*src+4*g+3}], v{t+2} offset:{src*16384+g*1024}")
        if src == 2: a.i("s_waitcnt lgkmcnt(0)")
    a.i(f"v_and_b32 v{t+3}, 31, v0")
    a.i(f"v_mul_u32_u24 v{t+3}, 896, v{t+3}")
    a.i(f"v_bfe_u32 v{t+4}, v0, 5, 1")
    a.i(f"v_lshlrev_b32 v{t+4}, 4, v{t+4}")
    a.i(f"v_add_u32 v{t+3}, v{t+3}, v{t+4}")
    a.i(f"s_mul_i32 s{S_T}, s{S_T+6}, {32*896}")
    a.i(f"s_lshl_b32 s{S_T+1}, s{S_T+7}, 6")
    a.i(f"s_add_u32 s{S_T}, s{S_T}, s{S_T+1}")
    srd(a, SK, S_OUT, 2048*896)
    a.i("s_waitcnt lgkmcnt(0)")
    for r in range(16):
        a.i(f"v_add_f32 v{AF+r}, v{AF+r}, v{AF+16+r}")
        a.i(f"v_add_f32 v{AF+32+r}, v{AF+32+r}, v{AF+48+r}")
    for r in range(16):
        a.i(f"v_add_f32 v{AF+r}, v{AF+r}, v{AF+32+r}")
    for src in (XR, BR):
        for k in range(8):
            a.i(f"v_lshlrev_b32 v{t+4}, 16, v{src+k}")
            a.i(f"v_and_b32 v{t+5}, 0xffff0000, v{src+k}")
            a.i(f"v_add_f32 v{AF+2*k}, v{AF+2*k}, v{t+4}")
            a.i(f"v_add_f32 v{AF+2*k+1}, v{AF+2*k+1}, v{t+5}")
    PK = OB
    for p in range(8):
        a.i(f"v_cvt_pk_bf16_f32 v{PK+p}, v{AF+2*p}, v{AF+2*p+1}")
    a.i("s_nop 1")
    for g in (0, 2):
        a.i(f"v_permlane32_swap_b32 v{PK+2*g}, v{PK+2*g+2}")
        a.i(f"v_permlane32_swap_b32 v{PK+2*g+1}, v{PK+2*g+3}")
    a.i(f"buffer_store_dwordx4 v[{PK}:{PK+3}], v{t+3}, s[{SK}:{SK+3}], s{S_T} offen")
    a.i(f"buffer_store_dwordx4 v[{PK+4}:{PK+7}], v{t+3}, s[{SK}:{SK+3}], s{S_T} offen offset:32")
    stamp(a, 11, SWS, dbg, tmp_v=252)
    a.i("s_endpgm")
    a.label("L2_ffn_none")
    a.i("s_barrier")
    a.i("s_endpgm")

def decode2(a):
    a.i(f"s_and_b32 s{S_XCD}, s2, 7")
    a.i(f"s_lshr_b32 s{S_SLOT}, s2, 3")
    a.i(f"s_lshr_b32 s3, s{S_SLOT}, 4")
    a.i(f"s_lshl_b32 s{S_H}, s{S_XCD}, 1")
    a.i(f"s_add_u32 s{S_H}, s{S_H}, s3")
    a.i(f"s_and_b32 s{S_QB}, s{S_SLOT}, 15")
    a.i(f"v_and_b32 v{VL16}, 63, v0")
    a.i(f"v_lshlrev_b32 v{VL16}, 4, v{VL16}")
    a.i(f"s_mov_b32 s{S_HI}, 0")
    a.i(f"s_mov_b32 s{S_HI+1}, -1")

def attn_pre_fused(a, dbg):
    FUSED[0] = True
    decode2(a)
    a.i(f"v_mov_b32 v2, {LSY + 128}")
    a.i("ds_read_b32 v3, v2")
    attn_setup(a)
    a.i("s_waitcnt lgkmcnt(0)")
    a.i(f"v_readfirstlane_b32 s{S_TAG}, v3")
    _uid = a.lines.__len__()
    a.i(f"v_mov_b32 v2, {LSY + 4}")
    a.i(f"s_mov_b32 s{S_T+8}, {SPIN_MAX*4}")
    a.label("L2_gow")
    a.i("ds_read_b32 v3, v2")
    a.i("s_waitcnt lgkmcnt(0)")
    a.i(f"v_readfirstlane_b32 s{S_TAG}, v3")
    a.i("s_nop 3")
    a.i(f"s_cmp_lg_u32 s{S_TAG}, 0")
    a.i("s_cbranch_scc1 L2_gox")
    a.i("s_sleep 1")
    a.i(f"s_sub_u32 s{S_T+8}, s{S_T+8}, 1")
    a.i(f"s_cmp_lg_u32 s{S_T+8}, 0")
    a.i("s_cbranch_scc1 L2_gow")
    a.label("L2_gox")
    stamp(a, 4, SWS, dbg, tmp_v=12)
    attn_part1(a)

def helper_poll_fused(a):
    FUSED[0] = True
    a.i("s_mov_b32 s8, s34")
    a.i("s_mov_b32 s9, s35")
    decode2(a)
    qkv_poll(a, 100)
    lds_signal(a, 4, 100)
    a.i("s_mov_b32 s34, s8")
    a.i("s_mov_b32 s35, s9")

def k2_fused(a, dbg):
    FUSED[0] = True
    a.label("L2_attn_entry")
    attention(a, dbg)
    a.label("L2_ffn_entry")
    decode2(a)
    ffn_fused(a, dbg)
    a.label("L_CODE_END")

def k2(dbg=False):
    a = Asm()
    name = "k2_kernel"
    header(a, name)
    a.i("s_cmp_ge_u32 s2, 256")
    a.i("s_cbranch_scc1 L2_end")
    a.i("s_load_dwordx16 s[16:31], s[0:1], 0")
    a.i("s_load_dwordx2 s[32:33], s[0:1], 80")
    a.i(f"s_and_b32 s{S_XCD}, s2, 7")
    a.i(f"s_lshr_b32 s{S_SLOT}, s2, 3")
    a.i(f"s_lshr_b32 s3, s{S_SLOT}, 4")
    a.i(f"s_lshl_b32 s{S_H}, s{S_XCD}, 1")
    a.i(f"s_add_u32 s{S_H}, s{S_H}, s3")
    a.i(f"s_and_b32 s{S_QB}, s{S_SLOT}, 15")
    a.i("v_lshrrev_b32 v2, 6, v0")
    a.i(f"v_and_b32 v{VL16}, 63, v0")
    a.i(f"v_readfirstlane_b32 s{S_W}, v2")
    a.i(f"v_lshlrev_b32 v{VL16}, 4, v{VL16}")
    a.i(f"s_mov_b32 s{S_HI}, 0")
    a.i(f"s_mov_b32 s{S_HI+1}, -1")
    a.i(f"s_and_b32 s{S_WL}, s{S_W}, 3")
    a.i("s_waitcnt lgkmcnt(0)")
    srd(a, SWS, 32, WS_SRD)
    stamp(a, 4, SWS, dbg, tmp_v=252)
    a.i(f"s_cmp_ge_u32 s{S_W}, 4")
    a.i("s_cbranch_scc1 L2_ffn")
    attention(a, dbg)
    a.label("L2_ffn")
    ffn(a, dbg)
    a.label("L2_end")
    a.i("s_endpgm")
    footer(a, name, 256)
    return a

if __name__ == "__main__":
    a = k2()
    open("k2.s", "w").write('.amdgcn_target "amdgcn-amd-amdhsa--gfx950"\n' + a.text())
    errs = check(a.lines, "k2")
    print("\n".join(errs[:40])); print(len(errs), "hazard findings")
```

```python
import sys
from common import *
import k1, k2, k3
def build(path, dbg=False):
    hdr_src = open("cdna_kernels/" + NAME + ".s.ref").read().split("\n")
    hdr = [l for l in hdr_src if l.startswith(";") and "@launch" not in l and "Override" not in l and "grid=" not in l]
    out = "\n".join(hdr) + "\n"
    out += f"; @launch kernel=k1_kernel grid=(256,1,1) block=(512,1,1) lds={k1.LDS1}\n"
    out += f"; @launch kernel=k2_kernel grid=(256,1,1) block=(512,1,1) lds={k2.LDS2}\n"
    out += f"; @launch kernel=k3_kernel grid=(224,1,1) block=(256,1,1) lds={k3.LDS3}\n"
    out += '.amdgcn_target "amdgcn-amd-amdhsa--gfx950"\n'
    nerr = 0
    for m in (k1.k1, k2.k2, k3.k3):
        a = m(dbg)
        errs = check_all(a.lines, m.__name__)
        for e in errs[:20]: print(e)
        nerr += len(errs)
        out += a.text()
    open(path, "w").write(out)
    return nerr
def build_fused(path, dbg=False):
    hdr_src = open("cdna_kernels/" + NAME + ".s.ref").read().split("\n")
    hdr = [l for l in hdr_src if l.startswith(";") and "@launch" not in l and "Override" not in l and "grid=" not in l]
    out = "\n".join(hdr) + "\n"
    out += f"; @launch grid=(256,1,1) block=(512,1,1) lds=163840\n"
    out += '.amdgcn_target "amdgcn-amd-amdhsa--gfx950"\n'
    k1.FUSED[0] = True
    def pre2(a_, d_):
        import re
        b = Asm(); k2.attn_pre_fused(b, d_)
        a_.lines += [re.sub(r"L2_go(w|x)", r"L2_go\1B", l) for l in b.lines]
    k1.PRE[0] = k2.attn_pre_fused; k1.PRE2[0] = pre2; k1.HPOLL[0] = k2.helper_poll_fused
    a = k1.k1(dbg)
    k2.k2_fused(a, dbg)
    footer(a, k1.KNAME, 256)
    errs = check_all(a.lines, "fused")
    for e in errs[:20]: print(e)
    out += a.text()
    open(path, "w").write(out)
    return len(errs)

if __name__ == "__main__":
    dbg = "--dbg" in sys.argv
    path = [x for x in sys.argv[1:] if not x.startswith("--")]
    path = path[0] if path else "cdna_kernels/" + NAME + ".s"
    n = build_fused(path, dbg) if '--fused' in sys.argv else build(path, dbg)
    print("hazard findings:", n, "->", path)
```
